```python
import torch

def _softmax(x, axis=-1):
    return torch.softmax(x, dim=axis)
def _gelu(x):
    return torch.nn.functional.gelu(x, approximate="tanh")
def _silu(x):
    return torch.nn.functional.silu(x)
def _sigmoid(x):
    return torch.sigmoid(x)
def _layernorm(x, axis=-1, eps=1e-5):
    m = x.mean(dim=axis, keepdim=True)
    v = x.var(dim=axis, keepdim=True, unbiased=False)
    return (x - m) / torch.sqrt(v + eps)
def _scatter_add(tgt, idx, src, axis=0):
    return tgt.clone().index_add_(axis, idx, src)
def _segment_sum(src, seg, n):
    out = torch.zeros((n,) + src.shape[1:], dtype=src.dtype)
    return out.index_add_(0, seg, src)
def _pad(x, pw):
    flat = tuple(v for pair in reversed(pw) for v in pair)
    return torch.nn.functional.pad(x, flat)

kernel_name = 'recurrent_scan__sliding_block__glu_gated_geglu__prompt'

def setup_inputs():

    _w = (lambda a: (lambda t: t.to(torch.bfloat16) if t.is_floating_point() else t)(torch.as_tensor(a)))
    def _A_setup():
        B, S, D = 1, 2048, 512
        return {
            "x": _w((lambda *s: torch.randn(*s, dtype=torch.bfloat16) * 0.05)(B, S, D)),
            "wqkv": _w((lambda *s: torch.randn(*s, dtype=torch.bfloat16) * 0.2)(D, 3 * D)),
            "wo": _w((lambda *s: torch.randn(*s, dtype=torch.bfloat16) * 0.2)(D, D)),
        }
    _A_in = _A_setup()

    def _B_setup():
        B, S, Dm, Df = 1, 2048, 512, 1792
        return {
            "x": _w((lambda *s: torch.randn(*s, dtype=torch.bfloat16) * 0.05)(B, S, Dm)),
            "w_gate": _w((lambda *s: torch.randn(*s, dtype=torch.bfloat16) * 0.1)(Dm, Df) * (Dm ** -0.5)),
            "w_up": _w((lambda *s: torch.randn(*s, dtype=torch.bfloat16) * 0.1)(Dm, Df) * (Dm ** -0.5)),
            "w_down": _w((lambda *s: torch.randn(*s, dtype=torch.bfloat16) * 0.1)(Df, Dm) * (Df ** -0.5)),
        }
    _B_in = _B_setup()

    return {
        "A_x": _A_in["x"],
        "A_wqkv": _A_in["wqkv"],
        "A_wo": _A_in["wo"],
        "B_x": _B_in["x"],
        "B_w_gate": _B_in["w_gate"],
        "B_w_up": _B_in["w_up"],
        "B_w_down": _B_in["w_down"],
    }

def reference(A_x, A_wqkv, A_wo, B_x, B_w_gate, B_w_up, B_w_down):
    def _A_ref(x, wqkv, wo):
        B, S, D = x.shape
        H = 32; Dh = D // H; W = 256
        qkv = (lambda x, *d: x.permute(*d))((x @ wqkv).reshape(B, S, 3, H, Dh), 2, 0, 3, 1, 4)
        q, k, v = qkv[0], qkv[1], qkv[2]
        scores = torch.einsum("bhqd,bhkd->bhqk", q, k) * (Dh ** -0.5)
        idx = torch.arange(S)
        mask = (idx[:, None] - idx[None, :] >= 0) & (idx[:, None] - idx[None, :] < W)
        scores = torch.where(mask[None, None], scores, -1e9)
        p = _softmax(scores, axis=-1)
        o = torch.einsum("bhqk,bhkd->bhqd", p, v)
        return (lambda x, *d: x.permute(*d))(o, 0, 2, 1, 3).reshape(B, S, D) @ wo

    def _B_ref(x, w_gate, w_up, w_down):
        g = torch.einsum("bsd,df->bsf", x, w_gate)
        u = torch.einsum("bsd,df->bsf", x, w_up)
        h = _gelu(g) * u
        return torch.einsum("bsf,fd->bsd", h, w_down)

    x = A_x
    xn = _layernorm(x, axis=-1)
    s = _A_ref(xn, A_wqkv, A_wo)
    g = _silu(_B_ref(xn, B_w_gate, B_w_up, B_w_down))
    return x + s * g
```

```python
import re
TRANS = ('v_exp_f32','v_rcp_f32','v_rsq_f32','v_log_f32','v_sqrt_f32')
def regs_of(tok):
    tok = tok.strip()
    m = re.fullmatch(r'([vsa])(\d+)', tok)
    if m: return [(m.group(1), int(m.group(2)))]
    m = re.fullmatch(r'([vsa])\[(\d+):(\d+)\]', tok)
    if m: return [(m.group(1), i) for i in range(int(m.group(2)), int(m.group(3))+1)]
    if tok == 'vcc': return [('s', 'vcc')]
    if tok == 'm0': return [('s', 'm0')]
    if tok == 'exec': return [('s', 'exec')]
    return []
class Asm:
    def __init__(self):
        self.lines = []; self.pos = 0
        self.lastw = {}
        self.lastCread = {}
        self.laststore = {}
    def raw(self, t): self.lines.append(t)
    def comment(self, t): self.lines.append('  ; ' + t)
    def nop(self, n):
        while n > 0:
            k = min(n, 8); self.lines.append(f'  s_nop {k-1}'); self.pos += k; n -= k
    def flush(self):
        self.nop(13)
    def label(self, l):
        self.flush(); self.lines.append(l + ':')
    def __call__(self, text):
        text = text.strip()
        op, _, rest = text.partition(' ')
        rest_main = re.split(r'\s+(?:offen|off\b|offset:|lds|row_|glc|sc0|sc1|nt|op_sel|bound)', ' ' + rest)[0]
        ops = [o.strip() for o in rest_main.split(',')] if rest_main.strip() else []
        is_mfma = op.startswith('v_mfma')
        is_store = ('store' in op) or op.startswith('ds_write')
        is_vmem = op.startswith('buffer_') or op.startswith('global_')
        is_ds = op.startswith('ds_')
        is_lds_dma = is_vmem and re.search(r'\blds\b', rest) is not None
        is_salu = op.startswith('s_')
        is_valu = op.startswith('v_') and not is_mfma
        nodst = is_store or is_lds_dma or op in ('s_waitcnt','s_barrier','s_nop','s_branch','s_endpgm','s_sleep','s_setprio') or op.startswith('s_cmp') or op.startswith('s_cbranch')
        if nodst: dst, src = [], ops
        else: dst, src = ops[:1], ops[1:]
        wr = [r for o in dst for r in regs_of(o)]
        rd = [r for o in src for r in regs_of(o)]
        if op.startswith('v_permlane') and 'swap' in op:
            wr = wr + rd; rd = wr[:]
        if op in ('v_fmac_f32',) : rd = rd + wr
        if op.startswith('v_cmp') and not wr: wr=[('s','vcc')]
        if is_lds_dma: rd = rd + [('s','m0')]
        if op.startswith('v_cndmask') and len(ops) == 3: rd = rd + [('s','vcc')]
        need = 0
        def req(prodpos, d):
            nonlocal need
            gap = self.pos - prodpos - 1
            if gap < d: need = max(need, d - gap)
        passes = 8 if '32x32' in op else 4
        cregs = set(regs_of(ops[3])) if (is_mfma and len(ops) > 3) else set()
        dregs = set(wr) if is_mfma else set()
        for r in set(rd) | set(wr):
            if r not in self.lastw: continue
            p, cls = self.lastw[r]
            isread = r in rd
            if cls in ('mfma8','mfma4'):
                big = 12 if cls == 'mfma8' else 8
                if is_mfma:
                    if r in cregs and isread and not any(x in rd and x not in cregs for x in [r]):
                        same = (cls == ('mfma8' if passes == 8 else 'mfma4')) and cregs == dregs
                        if not same: req(p, big)
                    if isread and r not in cregs: req(p, big)
                else:
                    req(p, big)
            elif cls in ('valu','trans','permlane'):
                if is_mfma and isread: req(p, 2)
                if cls == 'trans' and isread and not is_mfma: req(p, 1)
                if isread and (op.startswith('v_permlane') or 'dpp' in text): req(p, 2)
                if isread and op.startswith('v_read'): req(p, 1)
            elif cls == 'valu_s':
                if isread and is_valu: req(p, 2)
                if isread and is_vmem: req(p, 5)
                if isread and op.startswith('v_read'): req(p, 4)
            elif cls == 'salu':
                if r == ('s','m0') and is_lds_dma: req(p, 1)
        if is_valu:
            for r in wr:
                if r in self.lastCread:
                    p, ps = self.lastCread[r]; req(p, 7 if ps == 8 else 3)
                if r in self.laststore: req(self.laststore[r], 2)
        if need > 0: self.nop(need)
        for r in wr:
            if is_mfma: self.lastw[r] = (self.pos, 'mfma8' if passes == 8 else 'mfma4')
            elif is_valu:
                if r[0] == 's': self.lastw[r] = (self.pos, 'valu_s')
                else: self.lastw[r] = (self.pos, 'trans' if op in TRANS else ('permlane' if 'permlane' in op else 'valu'))
            elif is_salu: self.lastw[r] = (self.pos, 'salu')
            else: self.lastw[r] = (self.pos, 'mem')
        if is_mfma:
            for r in cregs: self.lastCread[r] = (self.pos, passes)
        if is_store and ('x4' in op or 'x3' in op or 'b128' in op):
            for r in rd:
                if r[0] == 'v': self.laststore[r] = self.pos
        self.lines.append('  ' + text); self.pos += 1
    def text(self): return '\n'.join(self.lines) + '\n'
```

```python
import sys
sys.path.insert(0, 'gen')
from asmlib import Asm
QB, KB, VB, HB, OB = 0, 0x200000, 0x400000, 0x600000, 0xE00000
WS_SIZE = 0x1000000
LOG2E = 1.4426950408889634
def fbits(x):
    import struct
    return struct.unpack('<I', struct.pack('<f', x))[0]
def hexf(x): return hex(fbits(x))

def label(a, l):
    a.raw(l + ':'); a.flush()

def srd(a, base, ptr, nbytes):
    a(f's_mov_b32 s{base}, s{ptr}'); a(f's_and_b32 s{base+1}, s{ptr+1}, 0xffff')
    a(f's_mov_b32 s{base+2}, {hex(nbytes)}'); a(f's_mov_b32 s{base+3}, 0x20000')

def gen_k1(a):
    XB, ACC, WF = 0, 128, 160
    vTR, vVoff, vVq, vVg, vL, vN, vH = 176, 177, 178, 179, 180, 181, 182
    vQK, vHo, vVo, vXo = 183, 184, 185, 186
    T = 190
    sX, sWq, sWg, sWu, sWS, sA, sB = 8, 12, 16, 20, 24, 28, 32
    sOffA, sOffB, sStep = 36, 37, 38
    a.raw('k1_kernel:')
    a('s_cmp_ge_u32 s2, 256'); a('s_cbranch_scc1 L_k1_end')
    a('s_load_dwordx4 s[40:43], s[0:1], 0')
    a('s_load_dwordx4 s[44:47], s[0:1], 32')
    a('s_load_dwordx2 s[48:49], s[0:1], 72')
    a('s_and_b32 s4, s2, 15'); a('s_lshr_b32 s5, s2, 4')
    a(f'v_and_b32 v{vL}, 63, v0'); a(f'v_lshrrev_b32 v{T}, 6, v0')
    a('s_nop 0'); a(f'v_readfirstlane_b32 s3, v{T}')
    a(f'v_and_b32 v{vN}, 31, v{vL}'); a(f'v_lshrrev_b32 v{vH}, 5, v{vL}')
    a('s_waitcnt lgkmcnt(0)')
    srd(a, sX, 40, 2048*1024); srd(a, sWq, 42, 512*3072); srd(a, sWg, 44, 512*3584); srd(a, sWu, 46, 512*3584)
    srd(a, sWS, 48, WS_SIZE)
    a('s_lshl_b32 s50, s5, 7'); a('s_lshl_b32 s51, s3, 5'); a('s_add_u32 s50, s50, s51')
    a(f'v_add_u32 v{T}, s50, v{vN}')
    a(f'v_lshlrev_b32 v{vXo}, 10, v{T}'); a(f'v_lshlrev_b32 v{T+1}, 6, v{vH}'); a(f'v_add_u32 v{vXo}, v{vXo}, v{T+1}')
    for S in range(8):
        for u in range(4):
            r = XB + 16*S + 4*u
            a(f'buffer_load_dwordx4 v[{r}:{r+3}], v{vXo}, s[{sX}:{sX+3}], 0 offen offset:{128*S+16*u}')
    a(f'v_lshlrev_b32 v{vQK}, 5, v{T}'); a(f'v_lshlrev_b32 v{T+1}, 4, v{vH}'); a(f'v_add_u32 v{vQK}, v{vQK}, v{T+1}')
    a('s_movk_i32 s52, 3584'); a(f'v_mul_lo_u32 v{vHo}, v{T}, s52'); a(f'v_add_u32 v{vHo}, v{vHo}, v{T+1}')
    a(f'v_lshlrev_b32 v{vVo}, 12, v{vN}'); a(f'v_add_u32 v{vVo}, v{vVo}, v{T+1}')
    a('s_lshl_b32 s53, s50, 1'); a(f'v_add_u32 v{vVo}, s53, v{vVo}')
    a(f'v_lshrrev_b32 v{T+2}, 2, v{vL}'); a(f'v_and_b32 v{T+2}, 3, v{T+2}')
    a(f'v_lshlrev_b32 v{T+3}, 5, v{vH}'); a(f'v_add_u32 v{T+2}, v{T+2}, v{T+3}'); a(f'v_lshlrev_b32 v{T+2}, 6, v{T+2}')
    a(f'v_lshrrev_b32 v{T+3}, 4, v{vL}'); a(f'v_and_b32 v{T+3}, 1, v{T+3}'); a(f'v_lshlrev_b32 v{T+3}, 5, v{T+3}')
    a(f'v_and_b32 v{T+4}, 3, v{vL}'); a(f'v_lshlrev_b32 v{T+4}, 3, v{T+4}')
    a(f'v_add_u32 v{vTR}, v{T+2}, v{T+3}'); a(f'v_add_u32 v{vTR}, v{vTR}, v{T+4}')
    a(f'v_lshrrev_b32 v{T+2}, 2, v{vL}'); a('s_lshl_b32 s53, s3, 4'); a(f'v_add_u32 v{T+2}, s53, v{T+2}')
    a(f'v_lshlrev_b32 v{T+3}, 4, v{T+4}'); a(f'v_lshrrev_b32 v{T+3}, 3, v{T+3}')
    a('s_movk_i32 s53, 3072'); a(f'v_mul_lo_u32 v{vVq}, v{T+2}, s53'); a(f'v_add_u32 v{vVq}, v{vVq}, v{T+3}')
    a(f'v_mul_lo_u32 v{vVg}, v{T+2}, s52'); a(f'v_add_u32 v{vVg}, v{vVg}, v{T+3}')
    cnt = [0]
    def set_stream(sreg):
        n = cnt[0]; cnt[0] += 1
        a(f's_min_u32 s54, s{sreg}, 79')
        a('s_cmp_lt_u32 s54, 24'); a(f's_cbranch_scc0 L_k1_gu{n}')
        for i in range(4):
            a(f's_mov_b32 s{sA+i}, s{sWq+i}'); a(f's_mov_b32 s{sB+i}, s{sWq+i}')
        a(f's_lshl_b32 s{sOffA}, s54, 7'); a(f's_add_u32 s{sOffB}, s{sOffA}, 64'); a(f's_mov_b32 s{sStep}, {64*3072}')
        a(f'v_mov_b32 v{vVoff}, v{vVq}'); a(f's_branch L_k1_sd{n}')
        label(a, f'L_k1_gu{n}')
        for i in range(4):
            a(f's_mov_b32 s{sA+i}, s{sWg+i}'); a(f's_mov_b32 s{sB+i}, s{sWu+i}')
        a(f's_sub_u32 s{sOffA}, s54, 24'); a(f's_lshl_b32 s{sOffA}, s{sOffA}, 6'); a(f's_mov_b32 s{sOffB}, s{sOffA}')
        a(f's_mov_b32 s{sStep}, {64*3584}'); a(f'v_mov_b32 v{vVoff}, v{vVg}')
        label(a, f'L_k1_sd{n}')
    def dma(buf):
        a(f's_add_u32 s55, s56, {buf*8192}'); a('s_mov_b32 m0, s55')
        a(f'buffer_load_dwordx4 v{vVoff}, s[{sA}:{sA+3}], s{sOffA} offen lds')
        a(f's_add_u32 s55, s56, {buf*8192+4096}'); a('s_mov_b32 m0, s55')
        a(f'buffer_load_dwordx4 v{vVoff}, s[{sB}:{sB+3}], s{sOffB} offen lds')
        a(f's_add_u32 s{sOffA}, s{sOffA}, s{sStep}'); a(f's_add_u32 s{sOffB}, s{sOffB}, s{sStep}')
    a('s_lshl_b32 s56, s3, 10')
    a('s_mul_i32 s7, s4, 5')
    a('s_mov_b32 s6, 0')
    set_stream(7)
    for c in range(3): dma(c)
    a('s_waitcnt vmcnt(6)')
    ones = T+20; a(f'v_mov_b32 v{ones}, 0x3f803f80')
    for i in range(4):
        a(f'v_mov_b32 v{T+i}, 0'); a(f'v_mov_b32 v{T+4+i}, 0')
    a('s_nop 1')
    for r in range(128):
        a(f'v_dot2_f32_bf16 v{T+r%4}, v{XB+r}, v{ones}, v{T+r%4}')
        a(f'v_dot2_f32_bf16 v{T+4+r%4}, v{XB+r}, v{XB+r}, v{T+4+r%4}')
    a('s_nop 3')
    a(f'v_add_f32 v{T}, v{T}, v{T+1}'); a(f'v_add_f32 v{T+2}, v{T+2}, v{T+3}'); a(f'v_add_f32 v{T}, v{T}, v{T+2}')
    a(f'v_add_f32 v{T+4}, v{T+4}, v{T+5}'); a(f'v_add_f32 v{T+6}, v{T+6}, v{T+7}'); a(f'v_add_f32 v{T+4}, v{T+4}, v{T+6}')
    a(f'v_mov_b32 v{T+1}, v{T}'); a(f'v_mov_b32 v{T+5}, v{T+4}')
    a(f'v_permlane32_swap_b32 v{T}, v{T+1}'); a(f'v_permlane32_swap_b32 v{T+4}, v{T+5}')
    a(f'v_add_f32 v{T}, v{T}, v{T+1}'); a(f'v_add_f32 v{T+4}, v{T+4}, v{T+5}')
    a(f'v_mul_f32 v{T}, {hexf(1/512)}, v{T}')
    a(f'v_mul_f32 v{T+4}, {hexf(1/512)}, v{T+4}')
    a(f'v_fma_f32 v{T+4}, -v{T}, v{T}, v{T+4}')
    a(f'v_add_f32 v{T+4}, {hexf(1e-5)}, v{T+4}')
    a(f'v_rsq_f32 v{T+4}, v{T+4}')
    a(f'v_mul_f32 v{T+5}, v{T}, v{T+4}'); a(f'v_sub_f32 v{T+5}, 0, v{T+5}')
    a(f'v_mov_b32 v{T+21}, 0xffff0000')
    for r in range(128):
        t0 = T+8+(r%4)*2
        a(f'v_lshlrev_b32 v{t0}, 16, v{XB+r}'); a(f'v_and_b32 v{t0+1}, v{T+21}, v{XB+r}')
        a(f'v_fma_f32 v{t0}, v{t0}, v{T+4}, v{T+5}'); a(f'v_fma_f32 v{t0+1}, v{t0+1}, v{T+4}, v{T+5}')
        a(f'v_cvt_pk_bf16_f32 v{XB+r}, v{t0}, v{t0+1}')
    def trreads(fb, buf, u):
        for H in range(2):
            for sec in range(2):
                d = WF + fb*8 + H*4 + sec*2
                a(f'ds_read_b64_tr_b16 v[{d}:{d+1}], v{vTR} offset:{buf*8192+H*4096+(8*u+4*sec)*64}')
    a('s_waitcnt vmcnt(2)'); a('s_barrier')
    trreads(0, 0, 0)
    def body(ori):
        for c in range(8):
            a('s_waitcnt vmcnt(2)'); a('s_barrier')
            if c == 5:
                a('s_add_u32 s57, s7, 1'); set_stream(57)
            dma((c+3) % 4)
            for u in range(4):
                step = 4*c+u
                nc, nu = (c, u+1) if u < 3 else ((c+1) % 8, 0)
                trreads((step+1) % 2, nc % 4, nu)
                a('s_waitcnt lgkmcnt(4)')
                fb = WF + (step % 2)*8
                xr = XB + 4*step
                for H in range(2):
                    acc = ACC + 16*H
                    C = '0' if step == 0 else f'v[{acc}:{acc+15}]'
                    w_ = f'v[{fb+4*H}:{fb+4*H+3}]'; x_ = f'v[{xr}:{xr+3}]'
                    A_, B_ = (w_, x_) if ori == 'A' else (x_, w_)
                    a(f'v_mfma_f32_32x32x16_bf16 v[{acc}:{acc+15}], {A_}, {B_}, {C}')
    def pack(H, order):
        for k, q in enumerate(order):
            s = ACC + 16*H + 4*q
            a(f'v_cvt_pk_bf16_f32 v{T+2*k}, v{s}, v{s+1}'); a(f'v_cvt_pk_bf16_f32 v{T+2*k+1}, v{s+2}, v{s+3}')
    def swaps():
        a(f'v_permlane32_swap_b32 v{T}, v{T+2}'); a(f'v_permlane32_swap_b32 v{T+1}, v{T+3}')
        a(f'v_permlane32_swap_b32 v{T+4}, v{T+6}'); a(f'v_permlane32_swap_b32 v{T+5}, v{T+7}')
    label(a, 'L_k1_tile')
    a('s_cmp_ge_u32 s7, 16'); a('s_cselect_b32 s58, 1, 0'); a('s_cmp_lt_u32 s7, 24'); a('s_cselect_b32 s59, 1, 0')
    a('s_and_b32 s58, s58, s59'); a('s_cmp_eq_u32 s58, 1'); a('s_cbranch_scc1 L_k1_bodyB')
    body('A')
    a('s_cmp_ge_u32 s7, 24'); a('s_cbranch_scc1 L_k1_epGU')
    a('s_lshr_b32 s58, s7, 3'); a('s_lshl_b32 s58, s58, 21')
    a('s_and_b32 s59, s7, 7'); a('s_lshl_b32 s59, s59, 18'); a('s_add_u32 s58, s58, s59')
    for H in range(2):
        pack(H, [0, 1, 2, 3]); swaps()
        a(f's_add_u32 s59, s58, {2*H*65536}')
        a(f'buffer_store_dwordx4 v[{T}:{T+3}], v{vQK}, s[{sWS}:{sWS+3}], s59 offen')
        a(f's_add_u32 s59, s58, {(2*H+1)*65536}')
        a(f'buffer_store_dwordx4 v[{T+4}:{T+7}], v{vQK}, s[{sWS}:{sWS+3}], s59 offen')
    a('s_branch L_k1_next')
    label(a, 'L_k1_epGU')
    c1 = T+30;
    a(f's_mov_b32 s60, {hexf(0.044715)}'); a(f's_mov_b32 s61, {hexf(-2*0.7978845608028654*LOG2E)}')
    for i in range(16):
        g, u_ = ACC+i, ACC+16+i
        t = T+10+(i%4)*3
        a(f'v_mul_f32 v{t}, v{g}, v{g}'); a(f'v_fma_f32 v{t}, v{t}, s60, 1.0'); a(f'v_mul_f32 v{t}, v{t}, v{g}')
        a(f'v_mul_f32 v{t}, s61, v{t}'); a(f'v_exp_f32 v{t}, v{t}'); a(f'v_add_f32 v{t}, 1.0, v{t}'); a(f'v_rcp_f32 v{t}, v{t}')
        a(f'v_mul_f32 v{t+1}, v{g}, v{u_}'); a(f'v_mul_f32 v{g}, v{t}, v{t+1}')
    pack(0, [0, 1, 2, 3]); swaps()
    a('s_sub_u32 s58, s7, 24'); a('s_lshl_b32 s58, s58, 6'); a(f's_add_u32 s58, s58, {HB}')
    a(f'buffer_store_dwordx4 v[{T}:{T+3}], v{vHo}, s[{sWS}:{sWS+3}], s58 offen')
    a(f'buffer_store_dwordx4 v[{T+4}:{T+7}], v{vHo}, s[{sWS}:{sWS+3}], s58 offen offset:32')
    a('s_branch L_k1_next')
    label(a, 'L_k1_bodyB')
    body('B')
    a('s_sub_u32 s58, s7, 16'); a('s_lshl_b32 s58, s58, 18'); a(f's_add_u32 s58, s58, {VB}')
    for H in range(2):
        pack(H, [0, 2, 1, 3])
        a(f's_add_u32 s59, s58, {2*H*65536}')
        a(f'buffer_store_dwordx4 v[{T}:{T+3}], v{vVo}, s[{sWS}:{sWS+3}], s59 offen')
        a(f'buffer_store_dwordx4 v[{T+4}:{T+7}], v{vVo}, s[{sWS}:{sWS+3}], s59 offen offset:32')
    label(a, 'L_k1_next')
    a('s_add_u32 s6, s6, 1'); a('s_add_u32 s7, s7, 1')
    a('s_cmp_lt_u32 s6, 5'); a('s_cbranch_scc1 L_k1_tile')
    a('s_waitcnt vmcnt(0)')
    a.raw('L_k1_end:')
    a('s_endpgm')

def gen_k2(a):
    KF, QF, VF, S, P, O, CU, CL = 0, 36, 40, 76, 144, 180, 184, 188
    vL, vC, vG, vK, vV, vQ, vO = 192, 193, 194, 195, 196, 197, 198
    T = 200
    sWS = 8
    a.raw('k2_kernel:')
    a('s_cmp_ge_u32 s2, 512'); a('s_cbranch_scc1 L_k2_end')
    a('s_load_dwordx2 s[4:5], s[0:1], 72')
    a(f'v_and_b32 v{vL}, 63, v0'); a(f'v_lshrrev_b32 v{T}, 6, v0'); a('s_nop 0'); a(f'v_readfirstlane_b32 s3, v{T}')
    a('s_lshr_b32 s12, s2, 4')
    a('s_and_b32 s13, s2, 15'); a('s_lshl_b32 s13, s13, 2'); a('s_add_u32 s13, s13, s3'); a('s_lshl_b32 s13, s13, 5')
    a(f'v_and_b32 v{vC}, 15, v{vL}'); a(f'v_lshrrev_b32 v{vG}, 4, v{vL}')
    a('s_waitcnt lgkmcnt(0)')
    srd(a, sWS, 4, WS_SIZE)
    a('s_lshl_b32 s14, s12, 16')
    a('s_sub_u32 s15, s13, 256')
    a(f'v_lshlrev_b32 v{T}, 3, v{vG}')
    a(f'v_add_u32 v{vQ}, s13, v{vC}'); a(f'v_lshlrev_b32 v{vQ}, 5, v{vQ}'); a(f'v_add_u32 v{vQ}, v{vQ}, v{T}')
    a(f'v_add_u32 v{vK}, s13, v{vC}'); a(f'v_lshlrev_b32 v{vK}, 5, v{vK}'); a(f'v_add_u32 v{vK}, v{vK}, v{T}')
    a(f'v_lshlrev_b32 v{vV}, 12, v{vC}'); a(f'v_lshlrev_b32 v{T}, 4, v{vG}'); a(f'v_add_u32 v{vV}, v{vV}, v{T}')
    a('s_lshl_b32 s16, s13, 1'); a(f'v_add_u32 v{vV}, s16, v{vV}')
    a(f's_add_u32 s17, s14, {QB}'); a(f's_add_u32 s18, s14, {KB-8192}'); a(f's_add_u32 s19, s18, 4096'); a(f's_add_u32 s20, s18, 8192')
    a(f's_add_u32 s21, s14, {VB-512}')
    for aa in range(2):
        a(f'buffer_load_dwordx2 v[{QF+2*aa}:{QF+2*aa+1}], v{vQ}, s[{sWS}:{sWS+3}], s17 offen offset:{512*aa}')
    for t in range(18):
        sreg = [18, 19, 20][t // 8]
        a(f'buffer_load_dwordx2 v[{KF+2*t}:{KF+2*t+1}], v{vK}, s[{sWS}:{sWS+3}], s{sreg} offen offset:{512*(t%8)}')
    for p in range(9):
        a(f'buffer_load_dwordx4 v[{VF+4*p}:{VF+4*p+3}], v{vV}, s[{sWS}:{sWS+3}], s21 offen offset:{64*p}')
    a(f'v_mov_b32 v{T+1}, 0xf149f2ca'); a(f'v_lshlrev_b32 v{T}, 2, v{vG}')
    for i in range(4):
        a(f'v_add_u32 v{T+2}, {i}, v{T}')
        a(f'v_cmp_gt_u32 vcc, v{T+2}, v{vC}'); a(f'v_cndmask_b32 v{CU+i}, v{T+1}, 0, vcc'); a(f'v_cndmask_b32 v{CL+i}, 0, v{T+1}, vcc')
    a(f'v_add_u32 v{vO}, s13, v{vC}'); a(f'v_lshlrev_b32 v{vO}, 10, v{vO}'); a(f'v_lshlrev_b32 v{T}, 3, v{vG}'); a(f'v_add_u32 v{vO}, v{vO}, v{T}')
    a('s_lshl_b32 s22, s12, 5'); a(f's_add_u32 s22, s22, {OB}'); a('s_add_u32 s23, s22, 16384')
    a('s_sub_u32 s24, 256, s13'); a('s_max_i32 s24, s24, 0'); a('s_lshr_b32 s24, s24, 4')
    a(f's_mov_b32 s25, {hexf(0.25*LOG2E)}')
    a('s_cmp_lt_u32 s13, 256'); a('s_cbranch_scc1 L_k2_edge')
    def attn(edge):
        for z in range(2): a(f'v_mov_b32 v{P+z}, 0');
        for z in range(2): a(f'v_mov_b32 v{P+34+z}, 0')
        a('s_waitcnt vmcnt(9)')
        for aq in range(2):
            for tt in range(17):
                t = aq + tt
                C = f'v[{CU}:{CU+3}]' if tt == 0 else (f'v[{CL}:{CL+3}]' if tt == 16 else '0')
                a(f'v_mfma_f32_16x16x16_bf16 v[{S+4*tt}:{S+4*tt+3}], v[{KF+2*t}:{KF+2*t+1}], v[{QF+2*aq}:{QF+2*aq+1}], {C}')
            if edge:
                for tt in range(16):
                    t = aq + tt
                    a(f's_cmp_gt_u32 s24, {t}'); a('s_cselect_b32 s26, 0xf149f2ca, 0')
                    for i in range(4): a(f'v_add_f32 v{S+4*tt+i}, s26, v{S+4*tt+i}')
            m = T
            a(f'v_max3_f32 v{m}, v{S}, v{S+1}, v{S+2}')
            a(f'v_max3_f32 v{m+1}, v{S+3}, v{S+4}, v{S+5}')
            k = 6
            j = 0
            while k + 1 < 68:
                a(f'v_max3_f32 v{m+j%2}, v{m+j%2}, v{S+k}, v{S+k+1}'); k += 2; j += 1
            a(f'v_max_f32 v{m}, v{m}, v{m+1}')
            a(f'v_mov_b32 v{m+1}, v{m}'); a(f'v_permlane16_swap_b32 v{m}, v{m+1}'); a(f'v_max_f32 v{m}, v{m}, v{m+1}')
            a(f'v_mov_b32 v{m+1}, v{m}'); a(f'v_permlane32_swap_b32 v{m}, v{m+1}'); a(f'v_max_f32 v{m}, v{m}, v{m+1}')
            a(f'v_mul_f32 v{m}, s25, v{m}'); a(f'v_sub_f32 v{m}, 0, v{m}')
            for i in range(68):
                a(f'v_fma_f32 v{S+i}, v{S+i}, s25, v{m}')
            for i in range(68):
                a(f'v_exp_f32 v{S+i}, v{S+i}')
            sm = T+2
            for i in range(4): a(f'v_add_f32 v{sm+i}, v{S+i}, v{S+4+i}')
            for i in range(8, 68): a(f'v_add_f32 v{sm+i%4}, v{sm+i%4}, v{S+i}')
            for tt in range(17):
                t = aq + tt
                a(f'v_cvt_pk_bf16_f32 v{P+2*t}, v{S+4*tt}, v{S+4*tt+1}'); a(f'v_cvt_pk_bf16_f32 v{P+2*t+1}, v{S+4*tt+2}, v{S+4*tt+3}')
            a(f'v_add_f32 v{sm}, v{sm}, v{sm+1}'); a(f'v_add_f32 v{sm+2}, v{sm+2}, v{sm+3}'); a(f'v_add_f32 v{sm}, v{sm}, v{sm+2}')
            a(f'v_mov_b32 v{sm+1}, v{sm}'); a(f'v_permlane16_swap_b32 v{sm}, v{sm+1}'); a(f'v_add_f32 v{sm}, v{sm}, v{sm+1}')
            a(f'v_mov_b32 v{sm+1}, v{sm}'); a(f'v_permlane32_swap_b32 v{sm}, v{sm+1}'); a(f'v_add_f32 v{sm}, v{sm}, v{sm+1}')
            a(f'v_rcp_f32 v{sm}, v{sm}')
            if aq == 0: a('s_waitcnt vmcnt(0)')
            for p in range(9):
                C = '0' if p == 0 else f'v[{O}:{O+3}]'
                a(f'v_mfma_f32_16x16x32_bf16 v[{O}:{O+3}], v[{VF+4*p}:{VF+4*p+3}], v[{P+4*p}:{P+4*p+3}], {C}')
            for i in range(4): a(f'v_mul_f32 v{T+8+i}, v{sm}, v{O+i}')
            a(f'v_cvt_pk_bf16_f32 v{T+12}, v{T+8}, v{T+9}'); a(f'v_cvt_pk_bf16_f32 v{T+13}, v{T+10}, v{T+11}')
            a(f'buffer_store_dwordx2 v[{T+12}:{T+13}], v{vO}, s[{sWS}:{sWS+3}], s{22+aq} offen')
            if aq == 0:
                a(f'v_mov_b32 v{P}, 0'); a(f'v_mov_b32 v{P+1}, 0')
    attn(False)
    a('s_branch L_k2_end')
    label(a, 'L_k2_edge')
    attn(True)
    a.raw('L_k2_end:')
    a('s_endpgm')

def gen_k3(a):
    XR, AS, AY, WF = 0, 64, 80, 96
    vL, vN, vH, vTR, vVoff, vXo, vXh, vOut = 104, 105, 106, 107, 108, 109, 110, 111
    XX = 112
    T = 124
    sX, sWo, sWd, sWS, sOut = 8, 12, 16, 20, 24
    a.raw('k3_kernel:')
    a('s_cmp_ge_u32 s2, 256'); a('s_cbranch_scc1 L_k3_end')
    a('s_load_dwordx2 s[40:41], s[0:1], 0'); a('s_load_dwordx2 s[42:43], s[0:1], 16'); a('s_load_dwordx4 s[44:47], s[0:1], 48')
    a('s_load_dwordx2 s[48:49], s[0:1], 72')
    a('s_and_b32 s4, s2, 15'); a('s_lshr_b32 s5, s2, 4')
    a(f'v_and_b32 v{vL}, 63, v0'); a(f'v_lshrrev_b32 v{T}, 6, v0'); a('s_nop 0'); a(f'v_readfirstlane_b32 s3, v{T}')
    a(f'v_and_b32 v{vN}, 31, v{vL}'); a(f'v_lshrrev_b32 v{vH}, 5, v{vL}')
    a('s_waitcnt lgkmcnt(0)')
    srd(a, sX, 40, 2048*1024); srd(a, sWo, 42, 512*1024); srd(a, sWd, 44, 1792*1024); srd(a, sOut, 46, 2048*1024); srd(a, sWS, 48, WS_SIZE)
    a('s_lshl_b32 s50, s5, 7'); a('s_lshl_b32 s51, s3, 5'); a('s_add_u32 s50, s50, s51')
    a(f'v_add_u32 v{T}, s50, v{vN}')
    a(f'v_lshlrev_b32 v{T+1}, 6, v{vH}')
    a(f'v_lshlrev_b32 v{vXo}, 10, v{T}'); a(f'v_add_u32 v{vXo}, v{vXo}, v{T+1}')
    a('s_movk_i32 s52, 3584'); a(f'v_mul_lo_u32 v{vXh}, v{T}, s52'); a(f'v_add_u32 v{vXh}, v{vXh}, v{T+1}')
    a('s_lshl_b32 s53, s4, 6')
    a(f'v_lshlrev_b32 v{vOut}, 10, v{T}'); a(f'v_add_u32 v{vOut}, s53, v{vOut}')
    a(f'v_lshlrev_b32 v{T+1}, 3, v{vH}'); a(f'v_add_u32 v{T+5}, v{vOut}, v{T+1}')
    for q in range(4):
        a(f'buffer_load_dwordx2 v[{XX+2*q}:{XX+2*q+1}], v{T+5}, s[{sX}:{sX+3}], 0 offen offset:{16*q}')
    a(f'v_lshlrev_b32 v{T+1}, 4, v{vH}'); a(f'v_add_u32 v{vOut}, v{vOut}, v{T+1}')
    a(f'v_lshrrev_b32 v{T+2}, 2, v{vL}'); a(f'v_and_b32 v{T+2}, 3, v{T+2}')
    a(f'v_lshlrev_b32 v{T+3}, 5, v{vH}'); a(f'v_add_u32 v{T+2}, v{T+2}, v{T+3}'); a(f'v_lshlrev_b32 v{T+2}, 6, v{T+2}')
    a(f'v_lshrrev_b32 v{T+3}, 4, v{vL}'); a(f'v_and_b32 v{T+3}, 1, v{T+3}'); a(f'v_lshlrev_b32 v{T+3}, 5, v{T+3}')
    a(f'v_and_b32 v{T+4}, 3, v{vL}'); a(f'v_lshlrev_b32 v{T+4}, 3, v{T+4}')
    a(f'v_add_u32 v{vTR}, v{T+2}, v{T+3}'); a(f'v_add_u32 v{vTR}, v{vTR}, v{T+4}')
    a(f'v_lshrrev_b32 v{T+2}, 2, v{vL}'); a('s_lshl_b32 s54, s3, 4'); a(f'v_add_u32 v{T+2}, s54, v{T+2}')
    a(f'v_lshlrev_b32 v{vVoff}, 10, v{T+2}'); a(f'v_lshlrev_b32 v{T+3}, 1, v{T+4}'); a(f'v_add_u32 v{vVoff}, v{vVoff}, v{T+3}')
    a('s_lshl_b32 s56, s3, 10')
    NC = 36
    def issue(cg):
        buf = cg % 4
        a(f's_add_u32 s55, s56, {buf*4096}'); a('s_mov_b32 m0, s55')
        if cg < 8:
            a(f's_add_u32 s57, s53, {cg*65536}')
            a(f'buffer_load_dwordx4 v{vVoff}, s[{sWo}:{sWo+3}], s57 offen lds')
            a(f's_mov_b32 s58, {OB+cg*128}'); vx = vXo
        else:
            a(f's_add_u32 s57, s53, {(cg-8)*65536}')
            a(f'buffer_load_dwordx4 v{vVoff}, s[{sWd}:{sWd+3}], s57 offen lds')
            a(f's_mov_b32 s58, {HB+(cg-8)*128}'); vx = vXh
        for u in range(4):
            r = XR + buf*16 + 4*u
            a(f'buffer_load_dwordx4 v[{r}:{r+3}], v{vx}, s[{sWS}:{sWS+3}], s58 offen offset:{16*u}')
    def trreads(fb, buf, u):
        for sec in range(2):
            d = WF + fb*4 + sec*2
            a(f'ds_read_b64_tr_b16 v[{d}:{d+1}], v{vTR} offset:{buf*4096+(8*u+4*sec)*64}')
    for c in range(3): issue(c)
    a('s_waitcnt vmcnt(5)'); a('s_barrier')
    trreads(0, 0, 0)
    for cg in range(NC):
        a(f's_waitcnt vmcnt({5 if cg+2 <= NC-1 else 0})'); a('s_barrier')
        if cg + 3 < NC: issue(cg+3)
        for u in range(4):
            step = 4*cg+u
            if step + 1 < 4*NC:
                nc, nu = (cg, u+1) if u < 3 else (cg+1, 0)
                trreads((step+1) % 2, nc % 4, nu)
                a('s_waitcnt lgkmcnt(2)')
            else:
                a('s_waitcnt lgkmcnt(0)')
            acc = AS if cg < 8 else AY
            first = (cg == 0 or cg == 8) and u == 0
            C = '0' if first else f'v[{acc}:{acc+15}]'
            fb = WF + (step % 2)*4
            xr = XR + (cg % 4)*16 + 4*u
            a(f'v_mfma_f32_32x32x16_bf16 v[{acc}:{acc+15}], v[{fb}:{fb+3}], v[{xr}:{xr+3}], {C}')
    a(f's_mov_b32 s60, {hexf(-LOG2E)}')
    for i in range(16):
        y, s_ = AY+i, AS+i
        t = T+8+(i%4)*2
        a(f'v_mul_f32 v{t}, s60, v{y}'); a(f'v_exp_f32 v{t}, v{t}'); a(f'v_add_f32 v{t}, 1.0, v{t}'); a(f'v_rcp_f32 v{t}, v{t}')
        a(f'v_mul_f32 v{t}, v{t}, v{y}'); a(f'v_mul_f32 v{s_}, v{s_}, v{t}')
    for q in range(4):
        for hh in range(2):
            t = T+16+hh
            e = 2*hh
            a(f'v_lshlrev_b32 v{t}, 16, v{XX+2*q+hh}'); a(f'v_add_f32 v{AS+4*q+e}, v{AS+4*q+e}, v{t}')
            a(f'v_and_b32 v{t}, 0xffff0000, v{XX+2*q+hh}'); a(f'v_add_f32 v{AS+4*q+e+1}, v{AS+4*q+e+1}, v{t}')
    for q in range(4):
        a(f'v_cvt_pk_bf16_f32 v{T+2*q}, v{AS+4*q}, v{AS+4*q+1}'); a(f'v_cvt_pk_bf16_f32 v{T+2*q+1}, v{AS+4*q+2}, v{AS+4*q+3}')
    a(f'v_permlane32_swap_b32 v{T}, v{T+2}'); a(f'v_permlane32_swap_b32 v{T+1}, v{T+3}')
    a(f'v_permlane32_swap_b32 v{T+4}, v{T+6}'); a(f'v_permlane32_swap_b32 v{T+5}, v{T+7}')
    a(f'buffer_store_dwordx4 v[{T}:{T+3}], v{vOut}, s[{sOut}:{sOut+3}], 0 offen')
    a(f'buffer_store_dwordx4 v[{T+4}:{T+7}], v{vOut}, s[{sOut}:{sOut+3}], 0 offen offset:32')
    a.raw('L_k3_end:')
    a('s_endpgm')

def kd(name, vg):
    return f'''.amdhsa_kernel {name}
  .amdhsa_next_free_vgpr {vg}
  .amdhsa_next_free_sgpr 102
  .amdhsa_accum_offset {vg}
  .amdhsa_group_segment_fixed_size 0
  .amdhsa_kernarg_size 80
  .amdhsa_user_sgpr_count 2
  .amdhsa_user_sgpr_kernarg_segment_ptr 1
  .amdhsa_system_sgpr_workgroup_id_x 1
.end_amdhsa_kernel
'''
def main():
    hdr = open('recurrent_scan__sliding_block__glu_gated_geglu__prompt.s.ref').read().split('; @launch')[0]
    out = hdr
    out += '; @launch kernel=k1_kernel grid=(256,1,1) block=(256,1,1) lds=32768\n'
    out += '; @launch kernel=k2_kernel grid=(512,1,1) block=(256,1,1) lds=0\n'
    out += '; @launch kernel=k3_kernel grid=(256,1,1) block=(256,1,1) lds=16384\n'
    out += '.amdgcn_target "amdgcn-amd-amdhsa--gfx950"\n.text\n'
    for name, g in (('k1_kernel', gen_k1), ('k2_kernel', gen_k2), ('k3_kernel', gen_k3)):
        a = Asm()
        out += f'.globl {name}\n.p2align 8\n.type {name},@function\n'
        g(a); out += a.text()
    out += '.section .rodata,"a"\n.p2align 6\n'
    out += kd('k1_kernel', 256) + '.p2align 6\n' + kd('k2_kernel', 256) + '.p2align 6\n' + kd('k3_kernel', 256)
    open('recurrent_scan__sliding_block__glu_gated_geglu__prompt.s', 'w').write(out)
main()
```

```python
import sys, os
EXP = os.environ.get('EXP','')
sys.path.insert(0, 'gen')
from asmlib import Asm
QB, KB, VB, HB, OB = 0, 0x200000, 0x400000, 0x600000, 0xE00000
WS_SIZE = 0x1000000
LOG2E = 1.4426950408889634
def fbits(x):
    import struct
    return struct.unpack('<I', struct.pack('<f', x))[0]
def hexf(x): return hex(fbits(x))

TS = os.environ.get('TS','')
tsn = [0]
def stamp(a):
    if not TS: return
    n = tsn[0]; tsn[0] += 1
    a('s_memtime s[78:79]'); a('s_waitcnt lgkmcnt(0)'); a(f's_mov_b32 s{80+n}, s78')
def stamp_out(a):
    if not TS: return
    a('s_load_dwordx2 s[78:79], s[0:1], 64'); a('s_waitcnt lgkmcnt(0)')
    a('s_mov_b32 s76, s78'); a('s_and_b32 s77, s79, 0xffff'); a('s_mov_b32 s78, 256'); a('s_mov_b32 s79, 0x20000')
    a('s_cmp_eq_u32 s2, 0'); a('s_cbranch_scc0 L_ts_skip'); a('s_cmp_eq_u32 s3, 0'); a('s_cbranch_scc0 L_ts_skip')
    for n in range(tsn[0]):
        a(f'v_mov_b32 v0, s{80+n}'); a('v_mov_b32 v1, 0'); a('s_nop 4'); a(f'buffer_store_dword v0, v1, s[76:79], 0 offen offset:{4*n}')
    a.raw('L_ts_skip:')
def label(a, l):
    a.raw(l + ':'); a.flush()

def srd(a, base, ptr, nbytes):
    a(f's_mov_b32 s{base}, s{ptr}'); a(f's_and_b32 s{base+1}, s{ptr+1}, 0xffff')
    a(f's_mov_b32 s{base+2}, {hex(nbytes)}'); a(f's_mov_b32 s{base+3}, 0x20000')

def gen_k1(a):
    XB, ACC, WF = 0, 128, 160
    vTR, vVoff, vVq, vVg, vL, vN, vH = 176, 177, 178, 179, 180, 181, 182
    vQK, vHo, vVo, vXo, vTRn = 183, 184, 185, 186, 187
    T = 190
    LA = 14
    sX, sWq, sWg, sWu, sWS, sA, sB = 8, 12, 16, 20, 24, 28, 32
    sOffA, sOffB, sStep = 36, 37, 38
    a.raw('k1_kernel:')
    a('s_cmp_ge_u32 s2, 256'); a('s_cbranch_scc1 L_k1_end')
    a('s_load_dwordx4 s[40:43], s[0:1], 0')
    a('s_load_dwordx4 s[44:47], s[0:1], 32')
    a('s_load_dwordx2 s[48:49], s[0:1], 72')
    a('s_and_b32 s4, s2, 15'); a('s_lshr_b32 s5, s2, 4')
    a(f'v_and_b32 v{vL}, 63, v0'); a(f'v_lshrrev_b32 v{T}, 6, v0')
    a('s_nop 0'); a(f'v_readfirstlane_b32 s3, v{T}')
    a(f'v_and_b32 v{vN}, 31, v{vL}'); a(f'v_lshrrev_b32 v{vH}, 5, v{vL}')
    a('s_waitcnt lgkmcnt(0)')
    stamp(a)
    srd(a, sX, 40, 2048*1024); srd(a, sWq, 42, 512*3072); srd(a, sWg, 44, 512*3584); srd(a, sWu, 46, 512*3584)
    srd(a, sWS, 48, WS_SIZE)
    a('s_lshl_b32 s50, s5, 7'); a('s_lshl_b32 s51, s3, 5'); a('s_add_u32 s50, s50, s51')
    a(f'v_add_u32 v{T}, s50, v{vN}')
    a(f'v_lshlrev_b32 v{vQK}, 5, v{T}'); a(f'v_lshlrev_b32 v{T+1}, 4, v{vH}'); a(f'v_add_u32 v{vQK}, v{vQK}, v{T+1}')
    a('s_movk_i32 s52, 3584'); a(f'v_mul_lo_u32 v{vHo}, v{T}, s52'); a(f'v_add_u32 v{vHo}, v{vHo}, v{T+1}')
    a(f'v_lshlrev_b32 v{vVo}, 12, v{vN}'); a(f'v_add_u32 v{vVo}, v{vVo}, v{T+1}')
    a('s_lshl_b32 s53, s50, 1'); a(f'v_add_u32 v{vVo}, s53, v{vVo}')
    a(f'v_lshrrev_b32 v{T+2}, 2, v{vL}'); a(f'v_and_b32 v{T+2}, 3, v{T+2}')
    a(f'v_lshlrev_b32 v{T+3}, 5, v{vH}'); a(f'v_add_u32 v{T+2}, v{T+2}, v{T+3}'); a(f'v_lshlrev_b32 v{T+2}, 6, v{T+2}')
    a(f'v_lshrrev_b32 v{T+3}, 4, v{vL}'); a(f'v_and_b32 v{T+3}, 1, v{T+3}'); a(f'v_lshlrev_b32 v{T+3}, 5, v{T+3}')
    a(f'v_and_b32 v{T+4}, 3, v{vL}'); a(f'v_lshlrev_b32 v{T+4}, 3, v{T+4}')
    a(f'v_add_u32 v{vTR}, v{T+2}, v{T+3}'); a(f'v_add_u32 v{vTR}, v{vTR}, v{T+4}')
    a(f'v_lshrrev_b32 v{T+2}, 2, v{vL}'); a('s_lshl_b32 s53, s3, 4'); a(f'v_add_u32 v{T+2}, s53, v{T+2}')
    a(f'v_lshlrev_b32 v{T+3}, 4, v{T+4}'); a(f'v_lshrrev_b32 v{T+3}, 3, v{T+3}')
    a('s_movk_i32 s53, 3072'); a(f'v_mul_lo_u32 v{vVq}, v{T+2}, s53'); a(f'v_add_u32 v{vVq}, v{vVq}, v{T+3}')
    a(f'v_mul_lo_u32 v{vVg}, v{T+2}, s52'); a(f'v_add_u32 v{vVg}, v{vVg}, v{T+3}')
    cnt = [0]
    def set_stream(sreg):
        n = cnt[0]; cnt[0] += 1
        a(f's_min_u32 s54, s{sreg}, 79')
        a('s_cmp_lt_u32 s54, 24'); a(f's_cbranch_scc0 L_k1_gu{n}')
        for i in range(4):
            a(f's_mov_b32 s{sA+i}, s{sWq+i}'); a(f's_mov_b32 s{sB+i}, s{sWq+i}')
        a(f's_lshl_b32 s{sOffA}, s54, 7'); a(f's_add_u32 s{sOffB}, s{sOffA}, 64'); a(f's_mov_b32 s{sStep}, {64*3072}')
        a(f'v_mov_b32 v{vVoff}, v{vVq}'); a(f's_branch L_k1_sd{n}')
        label(a, f'L_k1_gu{n}')
        for i in range(4):
            a(f's_mov_b32 s{sA+i}, s{sWg+i}'); a(f's_mov_b32 s{sB+i}, s{sWu+i}')
        a(f's_sub_u32 s{sOffA}, s54, 24'); a(f's_lshl_b32 s{sOffA}, s{sOffA}, 6'); a(f's_mov_b32 s{sOffB}, s{sOffA}')
        a(f's_mov_b32 s{sStep}, {64*3584}'); a(f'v_mov_b32 v{vVoff}, v{vVg}')
        label(a, f'L_k1_sd{n}')
    def dma(buf):
        a(f's_add_u32 s55, s62, {buf*8192}'); a('s_mov_b32 m0, s55')
        a(f'buffer_load_dwordx4 v{vVoff}, s[{sA}:{sA+3}], s{sOffA} offen lds')
        a(f's_add_u32 s55, s62, {buf*8192+4096}'); a('s_mov_b32 m0, s55')
        a(f'buffer_load_dwordx4 v{vVoff}, s[{sB}:{sB+3}], s{sOffB} offen lds')
        a(f's_add_u32 s{sOffA}, s{sOffA}, s{sStep}'); a(f's_add_u32 s{sOffB}, s{sOffB}, s{sStep}')
    a('s_lshl_b32 s56, s3, 10')
    a('s_mul_i32 s7, s4, 5')
    a('s_mov_b32 s6, 0')
    a('s_mov_b32 s57, s7'); a('s_mov_b32 s62, s56')
    set_stream(57)
    for c in range(8): dma(c)
    a(f'v_lshrrev_b32 v{T+2}, 4, v{vL}'); a(f'v_and_b32 v{T+3}, 15, v{vL}')
    a('s_lshl_b32 s58, s3, 14'); a('s_add_u32 s58, s58, 65536')
    a(f'v_and_b32 v{T+6}, 15, v{vN}'); a(f'v_lshlrev_b32 v{T+7}, 2, v{vH}')
    for u in range(4):
        for S in range(2):
            a(f'v_add_u32 v{T+8}, {8*S+u}, v{T+7}'); a(f'v_xor_b32 v{T+8}, v{T+8}, v{T+6}'); a(f'v_lshlrev_b32 v{T+8}, 4, v{T+8}')
            a(f'v_lshlrev_b32 v{T+22+2*u+S}, 8, v{vN}'); a(f'v_add_u32 v{T+22+2*u+S}, v{T+22+2*u+S}, v{T+8}'); a(f'v_add_u32 v{T+22+2*u+S}, s58, v{T+22+2*u+S}')
    for i in range(8):
        a(f'v_add_u32 v{T+4}, {4*i}, v{T+2}'); a(f'v_and_b32 v{T+5}, 15, v{T+4}'); a(f'v_xor_b32 v{T+5}, v{T+3}, v{T+5}')
        a(f'v_add_u32 v{T+4}, s50, v{T+4}'); a(f'v_lshlrev_b32 v{T+4}, 10, v{T+4}'); a(f'v_lshlrev_b32 v{T+5}, 4, v{T+5}'); a(f'v_add_u32 v{T+30+i}, v{T+4}, v{T+5}')
    def xq(q):
        a(f's_movk_i32 s61, {256*q}')
        for i in range(8):
            a(f's_add_u32 s55, s58, {(q%2)*8192+i*1024}'); a('s_mov_b32 m0, s55')
            a(f'buffer_load_dwordx4 v{T+30+i}, s[{sX}:{sX+3}], s61 offen lds')
    xq(0); xq(1)
    for q in range(4):
        a(f's_waitcnt vmcnt({8 if q < 3 else 0})')
        for S in range(2):
            for u in range(4):
                rg = XB + 16*(2*q+S) + 4*u
                a(f'ds_read_b128 v[{rg}:{rg+3}], v{T+22+2*u+S} offset:{(q%2)*8192}')
        a('s_waitcnt lgkmcnt(0)')
        if q + 2 < 4: xq(q+2)
    a('s_barrier')
    a('s_add_u32 s57, s57, 1'); set_stream(57); a('s_xor_b32 s62, s62, 0x10000')
    for c in range(8, LA): dma(c % 8)
    a(f'v_xor_b32 v{vTRn}, 0x10000, v{vTR}')
    ones = T+20; a(f'v_mov_b32 v{ones}, 0x3f803f80')
    for i in range(4):
        a(f'v_mov_b32 v{T+i}, 0'); a(f'v_mov_b32 v{T+4+i}, 0')
    a('s_nop 1')
    for r in range(128):
        a(f'v_dot2_f32_bf16 v{T+r%4}, v{XB+r}, v{ones}, v{T+r%4}')
        a(f'v_dot2_f32_bf16 v{T+4+r%4}, v{XB+r}, v{XB+r}, v{T+4+r%4}')
    a('s_nop 3')
    a(f'v_add_f32 v{T}, v{T}, v{T+1}'); a(f'v_add_f32 v{T+2}, v{T+2}, v{T+3}'); a(f'v_add_f32 v{T}, v{T}, v{T+2}')
    a(f'v_add_f32 v{T+4}, v{T+4}, v{T+5}'); a(f'v_add_f32 v{T+6}, v{T+6}, v{T+7}'); a(f'v_add_f32 v{T+4}, v{T+4}, v{T+6}')
    a(f'v_mov_b32 v{T+1}, v{T}'); a(f'v_mov_b32 v{T+5}, v{T+4}')
    a(f'v_permlane32_swap_b32 v{T}, v{T+1}'); a(f'v_permlane32_swap_b32 v{T+4}, v{T+5}')
    a(f'v_add_f32 v{T}, v{T}, v{T+1}'); a(f'v_add_f32 v{T+4}, v{T+4}, v{T+5}')
    a(f'v_mul_f32 v{T}, {hexf(1/512)}, v{T}')
    a(f'v_mul_f32 v{T+4}, {hexf(1/512)}, v{T+4}')
    a(f'v_fma_f32 v{T+4}, -v{T}, v{T}, v{T+4}')
    a(f'v_add_f32 v{T+4}, {hexf(1e-5)}, v{T+4}')
    a(f'v_rsq_f32 v{T+4}, v{T+4}')
    a(f'v_mul_f32 v{T+5}, v{T}, v{T+4}'); a(f'v_sub_f32 v{T+5}, 0, v{T+5}')
    a(f'v_mov_b32 v{T+21}, 0xffff0000')
    for r in range(128):
        t0 = T+8+(r%4)*2
        a(f'v_lshlrev_b32 v{t0}, 16, v{XB+r}'); a(f'v_and_b32 v{t0+1}, v{T+21}, v{XB+r}')
        a(f'v_fma_f32 v{t0}, v{t0}, v{T+4}, v{T+5}'); a(f'v_fma_f32 v{t0+1}, v{t0+1}, v{T+4}, v{T+5}')
        a(f'v_cvt_pk_bf16_f32 v{XB+r}, v{t0}, v{t0+1}')
    def trreads(fb, buf, u, vb=None):
        vb = vTR if vb is None else vb
        for H in range(2):
            for sec in range(2):
                d = WF + fb*8 + H*4 + sec*2
                a(f'ds_read_b64_tr_b16 v[{d}:{d+1}], v{vb} offset:{buf*8192+H*4096+(8*u+4*sec)*64}')
    stamp(a)
    a(f's_waitcnt vmcnt({2*(LA-1)})'); a('s_barrier')
    trreads(0, 0, 0)
    def body(ori):
        for c in range(8):
            a(f's_waitcnt vmcnt({2*(LA-2)})'); a('s_barrier')
            if (c + LA) % 8 == 0:
                a('s_add_u32 s57, s57, 1'); set_stream(57); a('s_xor_b32 s62, s62, 0x10000')
            dma((c+LA) % 8)
            for u in range(4):
                step = 4*c+u
                nc, nu = (c, u+1) if u < 3 else ((c+1) % 8, 0)
                trreads((step+1) % 2, nc, nu, vTRn if step == 31 else None)
                a('s_waitcnt lgkmcnt(4)')
                fb = WF + (step % 2)*8
                xr = XB + 4*step
                for H in range(2):
                    acc = ACC + 16*H
                    C = '0' if step == 0 else f'v[{acc}:{acc+15}]'
                    w_ = f'v[{fb+4*H}:{fb+4*H+3}]'; x_ = f'v[{xr}:{xr+3}]'
                    A_, B_ = (w_, x_) if ori == 'A' else (x_, w_)
                    a(f'v_mfma_f32_32x32x16_bf16 v[{acc}:{acc+15}], {A_}, {B_}, {C}')
    def pack(H, order):
        for k, q in enumerate(order):
            s = ACC + 16*H + 4*q
            a(f'v_cvt_pk_bf16_f32 v{T+2*k}, v{s}, v{s+1}'); a(f'v_cvt_pk_bf16_f32 v{T+2*k+1}, v{s+2}, v{s+3}')
    def swaps():
        a(f'v_permlane32_swap_b32 v{T}, v{T+2}'); a(f'v_permlane32_swap_b32 v{T+1}, v{T+3}')
        a(f'v_permlane32_swap_b32 v{T+4}, v{T+6}'); a(f'v_permlane32_swap_b32 v{T+5}, v{T+7}')
    label(a, 'L_k1_tile')
    a('s_cmp_ge_u32 s7, 16'); a('s_cselect_b32 s58, 1, 0'); a('s_cmp_lt_u32 s7, 24'); a('s_cselect_b32 s59, 1, 0')
    a('s_and_b32 s58, s58, s59'); a('s_cmp_eq_u32 s58, 1'); a('s_cbranch_scc1 L_k1_bodyB')
    body('A')
    a('s_cmp_ge_u32 s7, 24'); a('s_cbranch_scc1 L_k1_epGU')
    a('s_lshr_b32 s58, s7, 3'); a('s_lshl_b32 s58, s58, 21')
    a('s_and_b32 s59, s7, 7'); a('s_lshl_b32 s59, s59, 18'); a('s_add_u32 s58, s58, s59')
    for H in range(2):
        pack(H, [0, 1, 2, 3]); swaps()
        a(f's_add_u32 s59, s58, {2*H*65536}')
        a(f'buffer_store_dwordx4 v[{T}:{T+3}], v{vQK}, s[{sWS}:{sWS+3}], s59 offen')
        a(f's_add_u32 s59, s58, {(2*H+1)*65536}')
        a(f'buffer_store_dwordx4 v[{T+4}:{T+7}], v{vQK}, s[{sWS}:{sWS+3}], s59 offen')
    a('s_branch L_k1_next')
    label(a, 'L_k1_epGU')
    c1 = T+30;
    a(f's_mov_b32 s60, {hexf(0.044715)}'); a(f's_mov_b32 s61, {hexf(-2*0.7978845608028654*LOG2E)}')
    for i in range(16):
        g, u_ = ACC+i, ACC+16+i
        t = T+10+(i%4)*3
        a(f'v_mul_f32 v{t}, v{g}, v{g}'); a(f'v_fma_f32 v{t}, v{t}, s60, 1.0'); a(f'v_mul_f32 v{t}, v{t}, v{g}')
        a(f'v_mul_f32 v{t}, s61, v{t}'); a(f'v_exp_f32 v{t}, v{t}'); a(f'v_add_f32 v{t}, 1.0, v{t}'); a(f'v_rcp_f32 v{t}, v{t}')
        a(f'v_mul_f32 v{t+1}, v{g}, v{u_}'); a(f'v_mul_f32 v{g}, v{t}, v{t+1}')
    pack(0, [0, 1, 2, 3]); swaps()
    a('s_sub_u32 s58, s7, 24'); a('s_lshl_b32 s58, s58, 6'); a(f's_add_u32 s58, s58, {HB}')
    a(f'buffer_store_dwordx4 v[{T}:{T+3}], v{vHo}, s[{sWS}:{sWS+3}], s58 offen')
    a(f'buffer_store_dwordx4 v[{T+4}:{T+7}], v{vHo}, s[{sWS}:{sWS+3}], s58 offen offset:32')
    a('s_branch L_k1_next')
    label(a, 'L_k1_bodyB')
    body('B')
    a('s_sub_u32 s58, s7, 16'); a('s_lshl_b32 s58, s58, 18'); a(f's_add_u32 s58, s58, {VB}')
    for H in range(2):
        pack(H, [0, 2, 1, 3])
        a(f's_add_u32 s59, s58, {2*H*65536}')
        a(f'buffer_store_dwordx4 v[{T}:{T+3}], v{vVo}, s[{sWS}:{sWS+3}], s59 offen')
        a(f'buffer_store_dwordx4 v[{T+4}:{T+7}], v{vVo}, s[{sWS}:{sWS+3}], s59 offen offset:32')
    label(a, 'L_k1_next')
    stamp(a)
    a(f'v_xor_b32 v{vTR}, 0x10000, v{vTR}'); a(f'v_xor_b32 v{vTRn}, 0x10000, v{vTRn}')
    a('s_add_u32 s6, s6, 1'); a('s_add_u32 s7, s7, 1')
    a('s_cmp_lt_u32 s6, 5'); a('s_cbranch_scc1 L_k1_tile')
    a('s_waitcnt vmcnt(0)')
    stamp_out(a)
    a.raw('L_k1_end:')
    a('s_endpgm')

def gen_k2(a):
    KF, QF, VF, S, P, O, CU, CL = 0, 36, 40, 76, 144, 180, 184, 188
    vL, vC, vG, vK, vV, vQ, vO = 192, 193, 194, 195, 196, 197, 198
    T = 200
    sWS = 8
    a.raw('k2_kernel:')
    a('s_cmp_ge_u32 s2, 512'); a('s_cbranch_scc1 L_k2_end')
    a('s_load_dwordx2 s[4:5], s[0:1], 72')
    a(f'v_and_b32 v{vL}, 63, v0'); a(f'v_lshrrev_b32 v{T}, 6, v0'); a('s_nop 0'); a(f'v_readfirstlane_b32 s3, v{T}')
    a('s_lshr_b32 s12, s2, 4')
    a('s_and_b32 s13, s2, 15'); a('s_lshl_b32 s13, s13, 2'); a('s_add_u32 s13, s13, s3'); a('s_lshl_b32 s13, s13, 5')
    a(f'v_and_b32 v{vC}, 15, v{vL}'); a(f'v_lshrrev_b32 v{vG}, 4, v{vL}')
    a('s_waitcnt lgkmcnt(0)')
    srd(a, sWS, 4, WS_SIZE)
    a('s_lshl_b32 s14, s12, 16')
    a('s_sub_u32 s15, s13, 256')
    a(f'v_lshlrev_b32 v{T}, 3, v{vG}')
    a(f'v_add_u32 v{vQ}, s13, v{vC}'); a(f'v_lshlrev_b32 v{vQ}, 5, v{vQ}'); a(f'v_add_u32 v{vQ}, v{vQ}, v{T}')
    a(f'v_add_u32 v{vK}, s13, v{vC}'); a(f'v_lshlrev_b32 v{vK}, 5, v{vK}'); a(f'v_add_u32 v{vK}, v{vK}, v{T}')
    a(f'v_lshlrev_b32 v{vV}, 12, v{vC}'); a(f'v_lshlrev_b32 v{T}, 4, v{vG}'); a(f'v_add_u32 v{vV}, v{vV}, v{T}')
    a('s_lshl_b32 s16, s13, 1'); a(f'v_add_u32 v{vV}, s16, v{vV}')
    a(f's_add_u32 s17, s14, {QB}'); a(f's_add_u32 s18, s14, {KB-8192}'); a(f's_add_u32 s19, s18, 4096'); a(f's_add_u32 s20, s18, 8192')
    a(f's_add_u32 s21, s14, {VB-512}')
    for aa in range(2):
        a(f'buffer_load_dwordx2 v[{QF+2*aa}:{QF+2*aa+1}], v{vQ}, s[{sWS}:{sWS+3}], s17 offen offset:{512*aa}')
    for t in range(18):
        sreg = [18, 19, 20][t // 8]
        a(f'buffer_load_dwordx2 v[{KF+2*t}:{KF+2*t+1}], v{vK}, s[{sWS}:{sWS+3}], s{sreg} offen offset:{512*(t%8)}')
    for p in range(9):
        a(f'buffer_load_dwordx4 v[{VF+4*p}:{VF+4*p+3}], v{vV}, s[{sWS}:{sWS+3}], s21 offen offset:{64*p}')
    a(f'v_mov_b32 v{T+1}, 0xf149f2ca'); a(f'v_lshlrev_b32 v{T}, 2, v{vG}')
    for i in range(4):
        a(f'v_add_u32 v{T+2}, {i}, v{T}')
        a(f'v_cmp_gt_u32 vcc, v{T+2}, v{vC}'); a(f'v_cndmask_b32 v{CU+i}, v{T+1}, 0, vcc'); a(f'v_cndmask_b32 v{CL+i}, 0, v{T+1}, vcc')
    a(f'v_add_u32 v{vO}, s13, v{vC}'); a(f'v_lshlrev_b32 v{vO}, 10, v{vO}'); a(f'v_lshlrev_b32 v{T}, 3, v{vG}'); a(f'v_add_u32 v{vO}, v{vO}, v{T}')
    a('s_lshl_b32 s22, s12, 5'); a(f's_add_u32 s22, s22, {OB}'); a('s_add_u32 s23, s22, 16384')
    a('s_sub_u32 s24, 256, s13'); a('s_max_i32 s24, s24, 0'); a('s_lshr_b32 s24, s24, 4')
    a(f's_mov_b32 s25, {hexf(0.25*LOG2E)}')
    a('s_cmp_lt_u32 s13, 256'); a('s_cbranch_scc1 L_k2_edge')
    def attn(edge):
        for z in range(2): a(f'v_mov_b32 v{P+z}, 0');
        for z in range(2): a(f'v_mov_b32 v{P+34+z}, 0')
        a('s_waitcnt vmcnt(9)')
        for aq in range(2):
            for tt in range(17):
                t = aq + tt
                C = f'v[{CU}:{CU+3}]' if tt == 0 else (f'v[{CL}:{CL+3}]' if tt == 16 else '0')
                a(f'v_mfma_f32_16x16x16_bf16 v[{S+4*tt}:{S+4*tt+3}], v[{KF+2*t}:{KF+2*t+1}], v[{QF+2*aq}:{QF+2*aq+1}], {C}')
            if edge:
                for tt in range(16):
                    t = aq + tt
                    a(f's_cmp_gt_u32 s24, {t}'); a('s_cselect_b32 s26, 0xf149f2ca, 0')
                    for i in range(4): a(f'v_add_f32 v{S+4*tt+i}, s26, v{S+4*tt+i}')
            m = T
            a(f'v_max3_f32 v{m}, v{S}, v{S+1}, v{S+2}')
            a(f'v_max3_f32 v{m+1}, v{S+3}, v{S+4}, v{S+5}')
            k = 6
            j = 0
            while k + 1 < 68:
                a(f'v_max3_f32 v{m+j%2}, v{m+j%2}, v{S+k}, v{S+k+1}'); k += 2; j += 1
            a(f'v_max_f32 v{m}, v{m}, v{m+1}')
            a(f'v_mov_b32 v{m+1}, v{m}'); a(f'v_permlane16_swap_b32 v{m}, v{m+1}'); a(f'v_max_f32 v{m}, v{m}, v{m+1}')
            a(f'v_mov_b32 v{m+1}, v{m}'); a(f'v_permlane32_swap_b32 v{m}, v{m+1}'); a(f'v_max_f32 v{m}, v{m}, v{m+1}')
            a(f'v_mul_f32 v{m}, s25, v{m}'); a(f'v_sub_f32 v{m}, 0, v{m}')
            for i in range(68):
                a(f'v_fma_f32 v{S+i}, v{S+i}, s25, v{m}')
            for i in range(68):
                a(f'v_exp_f32 v{S+i}, v{S+i}')
            sm = T+2
            for i in range(4): a(f'v_add_f32 v{sm+i}, v{S+i}, v{S+4+i}')
            for i in range(8, 68): a(f'v_add_f32 v{sm+i%4}, v{sm+i%4}, v{S+i}')
            for tt in range(17):
                t = aq + tt
                a(f'v_cvt_pk_bf16_f32 v{P+2*t}, v{S+4*tt}, v{S+4*tt+1}'); a(f'v_cvt_pk_bf16_f32 v{P+2*t+1}, v{S+4*tt+2}, v{S+4*tt+3}')
            a(f'v_add_f32 v{sm}, v{sm}, v{sm+1}'); a(f'v_add_f32 v{sm+2}, v{sm+2}, v{sm+3}'); a(f'v_add_f32 v{sm}, v{sm}, v{sm+2}')
            a(f'v_mov_b32 v{sm+1}, v{sm}'); a(f'v_permlane16_swap_b32 v{sm}, v{sm+1}'); a(f'v_add_f32 v{sm}, v{sm}, v{sm+1}')
            a(f'v_mov_b32 v{sm+1}, v{sm}'); a(f'v_permlane32_swap_b32 v{sm}, v{sm+1}'); a(f'v_add_f32 v{sm}, v{sm}, v{sm+1}')
            a(f'v_rcp_f32 v{sm}, v{sm}')
            if aq == 0: a('s_waitcnt vmcnt(0)')
            for p in range(9):
                C = '0' if p == 0 else f'v[{O}:{O+3}]'
                a(f'v_mfma_f32_16x16x32_bf16 v[{O}:{O+3}], v[{VF+4*p}:{VF+4*p+3}], v[{P+4*p}:{P+4*p+3}], {C}')
            for i in range(4): a(f'v_mul_f32 v{T+8+i}, v{sm}, v{O+i}')
            a(f'v_cvt_pk_bf16_f32 v{T+12}, v{T+8}, v{T+9}'); a(f'v_cvt_pk_bf16_f32 v{T+13}, v{T+10}, v{T+11}')
            a(f'buffer_store_dwordx2 v[{T+12}:{T+13}], v{vO}, s[{sWS}:{sWS+3}], s{22+aq} offen')
            if aq == 0:
                a(f'v_mov_b32 v{P}, 0'); a(f'v_mov_b32 v{P+1}, 0')
    attn(False)
    a('s_branch L_k2_end')
    label(a, 'L_k2_edge')
    attn(True)
    a.raw('L_k2_end:')
    a('s_endpgm')

def gen_k3(a):
    NB = 9; LA = 8; SLOT = 16384; NC = 36
    AS, AY, WF, XF = 0, 16, 32, 40
    vL, vN, vH, vTR, vW, vOut = 48, 49, 50, 51, 52, 53
    vXA = 54
    vXo, vXh = 58, 60
    XX = 62
    T = 72
    vXB, vTRB, vXC, vTRC = 84, 88, 89, 93
    sX, sWo, sWd, sWS, sOut = 8, 12, 16, 20, 24
    a.raw('k3_kernel:')
    a('s_cmp_ge_u32 s2, 256'); a('s_cbranch_scc1 L_k3_end')
    a('s_load_dwordx2 s[40:41], s[0:1], 0'); a('s_load_dwordx2 s[42:43], s[0:1], 16'); a('s_load_dwordx4 s[44:47], s[0:1], 48')
    a('s_load_dwordx2 s[48:49], s[0:1], 72')
    a('s_and_b32 s5, s2, 7'); a('s_lshr_b32 s4, s2, 3'); a('s_and_b32 s30, s4, 3'); a('s_lshl_b32 s30, s30, 3'); a('s_add_u32 s5, s5, s30'); a('s_lshr_b32 s4, s4, 2')
    a(f'v_and_b32 v{vL}, 63, v0'); a(f'v_lshrrev_b32 v{T}, 6, v0'); a('s_nop 0'); a(f'v_readfirstlane_b32 s3, v{T}')
    a(f'v_and_b32 v{vN}, 31, v{vL}'); a(f'v_lshrrev_b32 v{vH}, 5, v{vL}')
    a('s_waitcnt lgkmcnt(0)')
    srd(a, sX, 40, 2048*1024); srd(a, sWo, 42, 512*1024); srd(a, sWd, 44, 1792*1024); srd(a, sOut, 46, 2048*1024); srd(a, sWS, 48, WS_SIZE)
    a('s_lshr_b32 s6, s3, 1'); a('s_and_b32 s7, s3, 1')
    a('s_lshl_b32 s50, s5, 6')
    a('s_lshl_b32 s53, s4, 7')
    a('s_lshl_b32 s51, s3, 4'); a('s_add_u32 s51, s51, s50')
    a(f'v_lshrrev_b32 v{T}, 3, v{vL}'); a(f'v_add_u32 v{T}, s51, v{T}')
    a(f'v_and_b32 v{T+1}, 7, v{vL}'); a(f'v_lshrrev_b32 v{T+2}, 4, v{vL}')
    a('s_movk_i32 s52, 3584')
    for i in range(2):
        a(f'v_add_u32 v{T+3}, {8*i}, v{T}')
        a(f'v_add_u32 v{T+4}, {4*i}, v{T+2}'); a(f'v_xor_b32 v{T+4}, v{T+1}, v{T+4}'); a(f'v_lshlrev_b32 v{T+4}, 4, v{T+4}')
        a(f'v_lshlrev_b32 v{vXo+i}, 10, v{T+3}'); a(f'v_add_u32 v{vXo+i}, v{vXo+i}, v{T+4}')
        a(f'v_mul_lo_u32 v{vXh+i}, v{T+3}, s52'); a(f'v_add_u32 v{vXh+i}, v{vXh+i}, v{T+4}')
    a(f'v_lshrrev_b32 v{T}, 2, v{vL}'); a('s_lshl_b32 s54, s3, 4'); a(f'v_add_u32 v{T}, s54, v{T}'); a(f'v_lshlrev_b32 v{vW}, 10, v{T}')
    a(f'v_and_b32 v{T+1}, 3, v{vL}'); a(f'v_lshlrev_b32 v{T+1}, 4, v{T+1}'); a(f'v_add_u32 v{vW}, v{vW}, v{T+1}'); a(f'v_add_u32 v{vW}, s53, v{vW}')
    a('s_lshl_b32 s54, s6, 5'); a(f'v_add_u32 v{T}, s54, v{vN}'); a(f'v_lshlrev_b32 v{T}, 7, v{T}')
    a(f'v_lshrrev_b32 v{T+1}, 1, v{vN}'); a(f'v_and_b32 v{T+1}, 7, v{T+1}'); a(f'v_lshlrev_b32 v{T+2}, 2, v{vH}')
    for u in range(4):
        a(f'v_add_u32 v{T+3}, {u}, v{T+2}'); a(f'v_xor_b32 v{T+3}, v{T+3}, v{T+1}'); a(f'v_lshlrev_b32 v{T+3}, 4, v{T+3}')
        a(f'v_add_u32 v{vXA+u}, v{T}, v{T+3}')
    a(f'v_lshrrev_b32 v{T+2}, 2, v{vL}'); a(f'v_and_b32 v{T+2}, 3, v{T+2}')
    a(f'v_lshlrev_b32 v{T+3}, 5, v{vH}'); a(f'v_add_u32 v{T+2}, v{T+2}, v{T+3}'); a(f'v_lshlrev_b32 v{T+2}, 6, v{T+2}')
    a(f'v_lshrrev_b32 v{T+3}, 4, v{vL}'); a(f'v_and_b32 v{T+3}, 1, v{T+3}'); a(f'v_lshlrev_b32 v{T+3}, 5, v{T+3}')
    a(f'v_and_b32 v{T+4}, 3, v{vL}'); a(f'v_lshlrev_b32 v{T+4}, 3, v{T+4}')
    a(f'v_add_u32 v{vTR}, v{T+2}, v{T+3}'); a(f'v_add_u32 v{vTR}, v{vTR}, v{T+4}')
    a('s_lshl_b32 s54, s7, 12'); a('s_add_u32 s54, s54, 8192'); a(f'v_add_u32 v{vTR}, s54, v{vTR}')
    a('s_lshl_b32 s54, s6, 5'); a('s_add_u32 s54, s54, s50'); a(f'v_add_u32 v{T}, s54, v{vN}')
    a('s_lshl_b32 s54, s7, 6'); a('s_add_u32 s54, s54, s53')
    a(f'v_lshlrev_b32 v{vOut}, 10, v{T}'); a(f'v_add_u32 v{vOut}, s54, v{vOut}')
    a(f'v_lshlrev_b32 v{T+1}, 3, v{vH}'); a(f'v_add_u32 v{T+5}, v{vOut}, v{T+1}')
    for q in range(4):
        a(f'buffer_load_dwordx2 v[{XX+2*q}:{XX+2*q+1}], v{T+5}, s[{sX}:{sX+3}], 0 offen offset:{16*q}')
    a(f'v_lshlrev_b32 v{T+1}, 4, v{vH}'); a(f'v_add_u32 v{vOut}, v{vOut}, v{T+1}')
    a('s_lshl_b32 s56, s3, 11')
    a('s_lshl_b32 s59, s3, 10')
    for i in range(16):
        a(f'v_mov_b32 v{AS+i}, 0'); a(f'v_mov_b32 v{AY+i}, 0')
    def issue_dyn(vx, sr):
        for i in range(2):
            a(f's_add_u32 s55, s56, s63'); a(f's_add_u32 s55, s55, {i*1024}'); a('s_mov_b32 m0, s55')
            a(f'buffer_load_dwordx4 v{vx+i}, s[{sWS}:{sWS+3}], s58 offen lds')
        for hf in range(2):
            a(f's_add_u32 s55, s59, s63'); a(f's_add_u32 s55, s55, {8192+hf*4096}'); a('s_mov_b32 m0, s55')
            if hf == 1: a('s_add_u32 s66, s57, 64')
            a(f'buffer_load_dwordx4 v{vW}, s[{sr}:{sr+3}], {"s57" if hf == 0 else "s66"} offen lds')
        a('s_add_u32 s58, s58, 128'); a('s_add_u32 s57, s57, 65536')
        a(f's_add_u32 s63, s63, {SLOT}'); a(f's_cmp_eq_u32 s63, {NB*SLOT}'); a('s_cselect_b32 s63, 0, s63')
    def reads_dyn(fb, u, nxt):
        xa, tr = (vXC, vTRC) if nxt else (vXB, vTRB)
        a(f'ds_read_b128 v[{XF+fb*4}:{XF+fb*4+3}], v{xa+u}')
        for sec in range(2):
            d = WF + fb*4 + sec*2
            a(f'ds_read_b64_tr_b16 v[{d}:{d+1}], v{tr} offset:{(8*u+4*sec)*64}')
    def set_addrs():
        a(f's_add_u32 s65, s64, {SLOT}'); a(f's_cmp_eq_u32 s65, {NB*SLOT}'); a('s_cselect_b32 s65, 0, s65')
        for u in range(4):
            a(f'v_add_u32 v{vXB+u}, s64, v{vXA+u}'); a(f'v_add_u32 v{vXC+u}, s65, v{vXA+u}')
        a(f'v_add_u32 v{vTRB}, s64, v{vTR}'); a(f'v_add_u32 v{vTRC}, s65, v{vTR}')
    def body(acc, lbl, vx, sr):
        label(a, lbl)
        a(f's_waitcnt vmcnt({4*(LA-2)})'); a('s_barrier')
        issue_dyn(vx, sr)
        for u in range(4):
            reads_dyn((u+1) % 2, (u+1) % 4, u == 3)
            a('s_waitcnt lgkmcnt(3)')
            fb = (u % 2)*4
            a(f'v_mfma_f32_32x32x16_bf16 v[{acc}:{acc+15}], v[{WF+fb}:{WF+fb+3}], v[{XF+fb}:{XF+fb+3}], v[{acc}:{acc+15}]')
        a('s_mov_b32 s64, s65'); set_addrs()
        a('s_sub_u32 s67, s67, 1'); a('s_cmp_lg_u32 s67, 0'); a(f's_cbranch_scc1 {lbl}')
    a('s_mov_b32 s63, 0'); a('s_mov_b32 s64, 0'); a(f's_mov_b32 s58, {OB}'); a('s_mov_b32 s57, 0')
    for c in range(LA): issue_dyn(vXo, sWo)
    a(f's_mov_b32 s58, {HB}'); a('s_mov_b32 s57, 0')
    set_addrs()
    a(f's_waitcnt vmcnt({4*(LA-1)})'); a('s_barrier')
    reads_dyn(0, 0, False)
    a('s_mov_b32 s67, 8'); body(AS, 'L_k3_p1', vXh, sWd)
    a('s_mov_b32 s67, 28'); body(AY, 'L_k3_p2', vXh, sWd)
    a('s_waitcnt lgkmcnt(0)')
    a(f's_mov_b32 s60, {hexf(-LOG2E)}')
    for i in range(16):
        y, s_ = AY+i, AS+i
        t = T+8+(i%4)*2
        a(f'v_mul_f32 v{t}, s60, v{y}'); a(f'v_exp_f32 v{t}, v{t}'); a(f'v_add_f32 v{t}, 1.0, v{t}'); a(f'v_rcp_f32 v{t}, v{t}')
        a(f'v_mul_f32 v{t}, v{t}, v{y}'); a(f'v_mul_f32 v{s_}, v{s_}, v{t}')
    for q in range(4):
        for hh in range(2):
            t = T+16+hh
            e = 2*hh
            a(f'v_lshlrev_b32 v{t}, 16, v{XX+2*q+hh}'); a(f'v_add_f32 v{AS+4*q+e}, v{AS+4*q+e}, v{t}')
            a(f'v_and_b32 v{t}, 0xffff0000, v{XX+2*q+hh}'); a(f'v_add_f32 v{AS+4*q+e+1}, v{AS+4*q+e+1}, v{t}')
    for q in range(4):
        a(f'v_cvt_pk_bf16_f32 v{T+2*q}, v{AS+4*q}, v{AS+4*q+1}'); a(f'v_cvt_pk_bf16_f32 v{T+2*q+1}, v{AS+4*q+2}, v{AS+4*q+3}')
    a(f'v_permlane32_swap_b32 v{T}, v{T+2}'); a(f'v_permlane32_swap_b32 v{T+1}, v{T+3}')
    a(f'v_permlane32_swap_b32 v{T+4}, v{T+6}'); a(f'v_permlane32_swap_b32 v{T+5}, v{T+7}')
    a(f'buffer_store_dwordx4 v[{T}:{T+3}], v{vOut}, s[{sOut}:{sOut+3}], 0 offen')
    a(f'buffer_store_dwordx4 v[{T+4}:{T+7}], v{vOut}, s[{sOut}:{sOut+3}], 0 offen offset:32')
    a.raw('L_k3_end:')
    a('s_endpgm')

def kd(name, vg):
    return f'''.amdhsa_kernel {name}
  .amdhsa_next_free_vgpr {vg}
  .amdhsa_next_free_sgpr 102
  .amdhsa_accum_offset {vg}
  .amdhsa_group_segment_fixed_size 0
  .amdhsa_kernarg_size 80
  .amdhsa_user_sgpr_count 2
  .amdhsa_user_sgpr_kernarg_segment_ptr 1
  .amdhsa_system_sgpr_workgroup_id_x 1
.end_amdhsa_kernel
'''
def main():
    hdr = open('recurrent_scan__sliding_block__glu_gated_geglu__prompt.s.ref').read().split('; @launch')[0]
    out = hdr
    out += '; @launch kernel=k1_kernel grid=(256,1,1) block=(256,1,1) lds=131072\n'
    out += '; @launch kernel=k2_kernel grid=(512,1,1) block=(256,1,1) lds=0\n'
    out += '; @launch kernel=k3_kernel grid=(256,1,1) block=(256,1,1) lds=147456\n'
    out += '.amdgcn_target "amdgcn-amd-amdhsa--gfx950"\n.text\n'
    for name, g in (('k1_kernel', gen_k1), ('k2_kernel', gen_k2), ('k3_kernel', gen_k3)):
        a = Asm()
        out += f'.globl {name}\n.p2align 8\n.type {name},@function\n'
        g(a); out += a.text()
    out += '.section .rodata,"a"\n.p2align 6\n'
    out += kd('k1_kernel', 256) + '.p2align 6\n' + kd('k2_kernel', 256) + '.p2align 6\n' + kd('k3_kernel', 96)
    open('recurrent_scan__sliding_block__glu_gated_geglu__prompt.s', 'w').write(out)
main()
```

```python
import sys, os
EXP = os.environ.get('EXP','')
sys.path.insert(0, 'gen')
from asmlib import Asm
QB, KB, VB, HB, OB = 0, 0x200000, 0x400000, 0x600000, 0xE00000
WS_SIZE = 0x1000000
LOG2E = 1.4426950408889634
def fbits(x):
    import struct
    return struct.unpack('<I', struct.pack('<f', x))[0]
def hexf(x): return hex(fbits(x))

TS = os.environ.get('TS','')
tsn = [0]
def stamp(a):
    if not TS: return
    n = tsn[0]; tsn[0] += 1
    a('s_memtime s[78:79]'); a('s_waitcnt lgkmcnt(0)'); a(f's_mov_b32 s{80+n}, s78')
def stamp_out(a):
    if not TS: return
    a('s_load_dwordx2 s[78:79], s[0:1], 64'); a('s_waitcnt lgkmcnt(0)')
    a('s_mov_b32 s76, s78'); a('s_and_b32 s77, s79, 0xffff'); a('s_mov_b32 s78, 256'); a('s_mov_b32 s79, 0x20000')
    lbl = f'L_ts_skip{len(a.lines)}'
    a('s_cmp_eq_u32 s2, 0'); a(f's_cbranch_scc0 {lbl}'); a('s_cmp_eq_u32 s3, 0'); a(f's_cbranch_scc0 {lbl}')
    for n in range(tsn[0]):
        a(f'v_mov_b32 v0, s{80+n}'); a('v_mov_b32 v1, 0'); a('s_nop 4'); a(f'buffer_store_dword v0, v1, s[76:79], 0 offen offset:{4*n}')
    a.raw(lbl + ':')
def label(a, l):
    a.raw(l + ':'); a.flush()

def srd(a, base, ptr, nbytes):
    a(f's_mov_b32 s{base}, s{ptr}'); a(f's_and_b32 s{base+1}, s{ptr+1}, 0xffff')
    a(f's_mov_b32 s{base+2}, {hex(nbytes)}'); a(f's_mov_b32 s{base+3}, 0x20000')

def gen_k1(a):
    XB, ACC, WF = 0, 128, 224
    vTR, vVoff, vVq, vVg, vL, vN, vH = 176, 177, 178, 179, 180, 181, 182
    vQK, vHo, vVo, vXo, vTRn = 183, 184, 185, 186, 187
    T = 190
    LA = 14
    sX, sWq, sWg, sWu, sWS, sA, sB = 8, 12, 16, 20, 24, 28, 32
    sOffA, sOffB, sStep = 36, 37, 38
    a.raw('k1_kernel:')
    a('s_cmp_ge_u32 s2, 256'); a('s_cbranch_scc1 L_k1_end')
    a('s_load_dwordx4 s[40:43], s[0:1], 0')
    a('s_load_dwordx4 s[44:47], s[0:1], 32')
    a('s_load_dwordx2 s[48:49], s[0:1], 72')
    a('s_and_b32 s4, s2, 15'); a('s_lshr_b32 s5, s2, 4')
    a(f'v_and_b32 v{vL}, 63, v0'); a(f'v_lshrrev_b32 v{T}, 6, v0')
    a('s_nop 0'); a(f'v_readfirstlane_b32 s3, v{T}')
    a(f'v_and_b32 v{vN}, 31, v{vL}'); a(f'v_lshrrev_b32 v{vH}, 5, v{vL}')
    a('s_waitcnt lgkmcnt(0)')
    stamp(a)
    srd(a, sX, 40, 2048*1024); srd(a, sWq, 42, 512*3072); srd(a, sWg, 44, 512*3584); srd(a, sWu, 46, 512*3584)
    srd(a, sWS, 48, WS_SIZE)
    a('s_lshl_b32 s50, s5, 7'); a('s_lshl_b32 s51, s3, 5'); a('s_add_u32 s50, s50, s51')
    a(f'v_add_u32 v{T}, s50, v{vN}')
    a(f'v_lshlrev_b32 v{vQK}, 5, v{T}'); a(f'v_lshlrev_b32 v{T+1}, 4, v{vH}'); a(f'v_add_u32 v{vQK}, v{vQK}, v{T+1}')
    a('s_movk_i32 s52, 3584'); a(f'v_mul_lo_u32 v{vHo}, v{T}, s52'); a(f'v_add_u32 v{vHo}, v{vHo}, v{T+1}')
    a(f'v_lshlrev_b32 v{vVo}, 12, v{vN}'); a(f'v_add_u32 v{vVo}, v{vVo}, v{T+1}')
    a('s_lshl_b32 s53, s50, 1'); a(f'v_add_u32 v{vVo}, s53, v{vVo}')
    a(f'v_lshrrev_b32 v{T+2}, 2, v{vL}'); a(f'v_and_b32 v{T+2}, 3, v{T+2}')
    a(f'v_lshlrev_b32 v{T+3}, 5, v{vH}'); a(f'v_add_u32 v{T+2}, v{T+2}, v{T+3}'); a(f'v_lshlrev_b32 v{T+2}, 6, v{T+2}')
    a(f'v_lshrrev_b32 v{T+3}, 4, v{vL}'); a(f'v_and_b32 v{T+3}, 1, v{T+3}'); a(f'v_lshlrev_b32 v{T+3}, 5, v{T+3}')
    a(f'v_and_b32 v{T+4}, 3, v{vL}'); a(f'v_lshlrev_b32 v{T+4}, 3, v{T+4}')
    a(f'v_add_u32 v{vTR}, v{T+2}, v{T+3}'); a(f'v_add_u32 v{vTR}, v{vTR}, v{T+4}')
    a(f'v_lshrrev_b32 v{T+2}, 2, v{vL}'); a('s_lshl_b32 s53, s3, 4'); a(f'v_add_u32 v{T+2}, s53, v{T+2}')
    a(f'v_lshlrev_b32 v{T+3}, 4, v{T+4}'); a(f'v_lshrrev_b32 v{T+3}, 3, v{T+3}')
    a('s_movk_i32 s53, 3072'); a(f'v_mul_lo_u32 v{vVq}, v{T+2}, s53'); a(f'v_add_u32 v{vVq}, v{vVq}, v{T+3}')
    a(f'v_mul_lo_u32 v{vVg}, v{T+2}, s52'); a(f'v_add_u32 v{vVg}, v{vVg}, v{T+3}')
    cnt = [0]
    def set_stream(sreg):
        n = cnt[0]; cnt[0] += 1
        a(f's_min_u32 s54, s{sreg}, 79')
        a('s_cmp_lt_u32 s54, 24'); a(f's_cbranch_scc0 L_k1_gu{n}')
        for i in range(4):
            a(f's_mov_b32 s{sA+i}, s{sWq+i}'); a(f's_mov_b32 s{sB+i}, s{sWq+i}')
        a(f's_lshl_b32 s{sOffA}, s54, 7'); a(f's_add_u32 s{sOffB}, s{sOffA}, 64'); a(f's_mov_b32 s{sStep}, {64*3072}')
        a(f'v_mov_b32 v{vVoff}, v{vVq}'); a(f's_branch L_k1_sd{n}')
        label(a, f'L_k1_gu{n}')
        for i in range(4):
            a(f's_mov_b32 s{sA+i}, s{sWg+i}'); a(f's_mov_b32 s{sB+i}, s{sWu+i}')
        a(f's_sub_u32 s{sOffA}, s54, 24'); a(f's_lshl_b32 s{sOffA}, s{sOffA}, 6'); a(f's_mov_b32 s{sOffB}, s{sOffA}')
        a(f's_mov_b32 s{sStep}, {64*3584}'); a(f'v_mov_b32 v{vVoff}, v{vVg}')
        label(a, f'L_k1_sd{n}')
    def dma(buf):
        a(f's_add_u32 s55, s62, {buf*8192}'); a('s_mov_b32 m0, s55')
        a(f'buffer_load_dwordx4 v{vVoff}, s[{sA}:{sA+3}], s{sOffA} offen lds')
        a(f's_add_u32 s55, s62, {buf*8192+4096}'); a('s_mov_b32 m0, s55')
        a(f'buffer_load_dwordx4 v{vVoff}, s[{sB}:{sB+3}], s{sOffB} offen lds')
        a(f's_add_u32 s{sOffA}, s{sOffA}, s{sStep}'); a(f's_add_u32 s{sOffB}, s{sOffB}, s{sStep}')
    a('s_lshl_b32 s56, s3, 10')
    a('s_mul_i32 s7, s4, 5')
    a('s_mov_b32 s6, 0')
    a('s_mov_b32 s57, s7'); a('s_mov_b32 s62, s56')
    set_stream(57)
    for c in range(8): dma(c)
    a(f'v_lshrrev_b32 v{T+2}, 4, v{vL}'); a(f'v_and_b32 v{T+3}, 15, v{vL}')
    a('s_lshl_b32 s58, s3, 14'); a('s_add_u32 s58, s58, 65536')
    a(f'v_and_b32 v{T+6}, 15, v{vN}'); a(f'v_lshlrev_b32 v{T+7}, 2, v{vH}')
    for u in range(4):
        for S in range(2):
            a(f'v_add_u32 v{T+8}, {8*S+u}, v{T+7}'); a(f'v_xor_b32 v{T+8}, v{T+8}, v{T+6}'); a(f'v_lshlrev_b32 v{T+8}, 4, v{T+8}')
            a(f'v_lshlrev_b32 v{T+22+2*u+S}, 8, v{vN}'); a(f'v_add_u32 v{T+22+2*u+S}, v{T+22+2*u+S}, v{T+8}'); a(f'v_add_u32 v{T+22+2*u+S}, s58, v{T+22+2*u+S}')
    for i in range(8):
        a(f'v_add_u32 v{T+4}, {4*i}, v{T+2}'); a(f'v_and_b32 v{T+5}, 15, v{T+4}'); a(f'v_xor_b32 v{T+5}, v{T+3}, v{T+5}')
        a(f'v_add_u32 v{T+4}, s50, v{T+4}'); a(f'v_lshlrev_b32 v{T+4}, 10, v{T+4}'); a(f'v_lshlrev_b32 v{T+5}, 4, v{T+5}'); a(f'v_add_u32 v{T+30+i}, v{T+4}, v{T+5}')
    def xq(q):
        a(f's_movk_i32 s61, {256*q}')
        for i in range(8):
            a(f's_add_u32 s55, s58, {(q%2)*8192+i*1024}'); a('s_mov_b32 m0, s55')
            a(f'buffer_load_dwordx4 v{T+30+i}, s[{sX}:{sX+3}], s61 offen lds')
    xq(0); xq(1)
    for q in range(4):
        a(f's_waitcnt vmcnt({8 if q < 3 else 0})')
        for S in range(2):
            for u in range(4):
                rg = XB + 16*(2*q+S) + 4*u
                a(f'ds_read_b128 v[{rg}:{rg+3}], v{T+22+2*u+S} offset:{(q%2)*8192}')
        a('s_waitcnt lgkmcnt(0)')
        if q + 2 < 4: xq(q+2)
    a('s_barrier')
    a('s_add_u32 s57, s57, 1'); set_stream(57); a('s_xor_b32 s62, s62, 0x10000')
    for c in range(8, LA): dma(c % 8)
    a(f'v_xor_b32 v{vTRn}, 0x10000, v{vTR}')
    ones = T+20; a(f'v_mov_b32 v{ones}, 0x3f803f80')
    for i in range(4):
        a(f'v_mov_b32 v{T+i}, 0'); a(f'v_mov_b32 v{T+4+i}, 0')
    a('s_nop 1')
    for r in range(128):
        a(f'v_dot2_f32_bf16 v{T+r%4}, v{XB+r}, v{ones}, v{T+r%4}')
        a(f'v_dot2_f32_bf16 v{T+4+r%4}, v{XB+r}, v{XB+r}, v{T+4+r%4}')
    a('s_nop 3')
    a(f'v_add_f32 v{T}, v{T}, v{T+1}'); a(f'v_add_f32 v{T+2}, v{T+2}, v{T+3}'); a(f'v_add_f32 v{T}, v{T}, v{T+2}')
    a(f'v_add_f32 v{T+4}, v{T+4}, v{T+5}'); a(f'v_add_f32 v{T+6}, v{T+6}, v{T+7}'); a(f'v_add_f32 v{T+4}, v{T+4}, v{T+6}')
    a(f'v_mov_b32 v{T+1}, v{T}'); a(f'v_mov_b32 v{T+5}, v{T+4}')
    a(f'v_permlane32_swap_b32 v{T}, v{T+1}'); a(f'v_permlane32_swap_b32 v{T+4}, v{T+5}')
    a(f'v_add_f32 v{T}, v{T}, v{T+1}'); a(f'v_add_f32 v{T+4}, v{T+4}, v{T+5}')
    a(f'v_mul_f32 v{T}, {hexf(1/512)}, v{T}')
    a(f'v_mul_f32 v{T+4}, {hexf(1/512)}, v{T+4}')
    a(f'v_fma_f32 v{T+4}, -v{T}, v{T}, v{T+4}')
    a(f'v_add_f32 v{T+4}, {hexf(1e-5)}, v{T+4}')
    a(f'v_rsq_f32 v{T+4}, v{T+4}')
    a(f'v_mul_f32 v{T+5}, v{T}, v{T+4}'); a(f'v_sub_f32 v{T+5}, 0, v{T+5}')
    a(f'v_mov_b32 v{T+21}, 0xffff0000')
    for r in range(128):
        t0 = T+8+(r%4)*2
        a(f'v_lshlrev_b32 v{t0}, 16, v{XB+r}'); a(f'v_and_b32 v{t0+1}, v{T+21}, v{XB+r}')
        a(f'v_fma_f32 v{t0}, v{t0}, v{T+4}, v{T+5}'); a(f'v_fma_f32 v{t0+1}, v{t0+1}, v{T+4}, v{T+5}')
        a(f'v_cvt_pk_bf16_f32 v{XB+r}, v{t0}, v{t0+1}')
    def trreads(fb, buf, u, vb=None):
        vb = vTR if vb is None else vb
        for H in range(2):
            for sec in range(2):
                d = WF + fb*8 + H*4 + sec*2
                a(f'ds_read_b64_tr_b16 v[{d}:{d+1}], v{vb} offset:{buf*8192+H*4096+(8*u+4*sec)*64}')
    stamp(a)
    a(f's_waitcnt vmcnt({2*(LA-1)})'); a('s_barrier')
    trreads(0, 0, 0); trreads(1, 0, 1); trreads(2, 0, 2)
    def body(ori):
        for c in range(8):
            a(f's_waitcnt vmcnt({2*(LA-2)})'); a('s_barrier')
            if (c + LA) % 8 == 0:
                a('s_add_u32 s57, s57, 1'); set_stream(57); a('s_xor_b32 s62, s62, 0x10000')
            dma((c+LA) % 8)
            for u in range(4):
                step = 4*c+u
                ns = step + 3
                trreads(ns % 4, (ns // 4) % 8, ns % 4, vTRn if ns >= 32 else None)
                a('s_waitcnt lgkmcnt(12)')
                fb = WF + (step % 4)*8
                xr = XB + 4*step
                for H in range(2):
                    acc = ACC + 16*H
                    C = '0' if step == 0 else f'v[{acc}:{acc+15}]'
                    w_ = f'v[{fb+4*H}:{fb+4*H+3}]'; x_ = f'v[{xr}:{xr+3}]'
                    A_, B_ = (w_, x_) if ori == 'A' else (x_, w_)
                    a(f'v_mfma_f32_32x32x16_bf16 v[{acc}:{acc+15}], {A_}, {B_}, {C}')
    def pack(H, order):
        for k, q in enumerate(order):
            s = ACC + 16*H + 4*q
            a(f'v_cvt_pk_bf16_f32 v{T+2*k}, v{s}, v{s+1}'); a(f'v_cvt_pk_bf16_f32 v{T+2*k+1}, v{s+2}, v{s+3}')
    def swaps():
        a(f'v_permlane32_swap_b32 v{T}, v{T+2}'); a(f'v_permlane32_swap_b32 v{T+1}, v{T+3}')
        a(f'v_permlane32_swap_b32 v{T+4}, v{T+6}'); a(f'v_permlane32_swap_b32 v{T+5}, v{T+7}')
    label(a, 'L_k1_tile')
    a('s_cmp_ge_u32 s7, 16'); a('s_cselect_b32 s58, 1, 0'); a('s_cmp_lt_u32 s7, 24'); a('s_cselect_b32 s59, 1, 0')
    a('s_and_b32 s58, s58, s59'); a('s_cmp_eq_u32 s58, 1'); a('s_cbranch_scc1 L_k1_bodyB')
    body('A')
    a('s_cmp_ge_u32 s7, 24'); a('s_cbranch_scc1 L_k1_epGU')
    a('s_lshr_b32 s58, s7, 3'); a('s_lshl_b32 s58, s58, 21')
    a('s_and_b32 s59, s7, 7'); a('s_lshl_b32 s59, s59, 18'); a('s_add_u32 s58, s58, s59')
    for H in range(2):
        pack(H, [0, 1, 2, 3]); swaps()
        a(f's_add_u32 s59, s58, {2*H*65536}')
        a(f'buffer_store_dwordx4 v[{T}:{T+3}], v{vQK}, s[{sWS}:{sWS+3}], s59 offen')
        a(f's_add_u32 s59, s58, {(2*H+1)*65536}')
        a(f'buffer_store_dwordx4 v[{T+4}:{T+7}], v{vQK}, s[{sWS}:{sWS+3}], s59 offen')
    a('s_branch L_k1_next')
    label(a, 'L_k1_epGU')
    c1 = T+30;
    a(f's_mov_b32 s60, {hexf(0.044715)}'); a(f's_mov_b32 s61, {hexf(-2*0.7978845608028654*LOG2E)}')
    for i in range(16):
        g, u_ = ACC+i, ACC+16+i
        t = T+10+(i%4)*3
        a(f'v_mul_f32 v{t}, v{g}, v{g}'); a(f'v_fma_f32 v{t}, v{t}, s60, 1.0'); a(f'v_mul_f32 v{t}, v{t}, v{g}')
        a(f'v_mul_f32 v{t}, s61, v{t}'); a(f'v_exp_f32 v{t}, v{t}'); a(f'v_add_f32 v{t}, 1.0, v{t}'); a(f'v_rcp_f32 v{t}, v{t}')
        a(f'v_mul_f32 v{t+1}, v{g}, v{u_}'); a(f'v_mul_f32 v{g}, v{t}, v{t+1}')
    pack(0, [0, 1, 2, 3]); swaps()
    a('s_sub_u32 s58, s7, 24'); a('s_lshl_b32 s58, s58, 6'); a(f's_add_u32 s58, s58, {HB}')
    a(f'buffer_store_dwordx4 v[{T}:{T+3}], v{vHo}, s[{sWS}:{sWS+3}], s58 offen')
    a(f'buffer_store_dwordx4 v[{T+4}:{T+7}], v{vHo}, s[{sWS}:{sWS+3}], s58 offen offset:32')
    a('s_branch L_k1_next')
    label(a, 'L_k1_bodyB')
    body('B')
    a('s_sub_u32 s58, s7, 16'); a('s_lshl_b32 s58, s58, 18'); a(f's_add_u32 s58, s58, {VB}')
    for H in range(2):
        pack(H, [0, 2, 1, 3])
        a(f's_add_u32 s59, s58, {2*H*65536}')
        a(f'buffer_store_dwordx4 v[{T}:{T+3}], v{vVo}, s[{sWS}:{sWS+3}], s59 offen')
        a(f'buffer_store_dwordx4 v[{T+4}:{T+7}], v{vVo}, s[{sWS}:{sWS+3}], s59 offen offset:32')
    label(a, 'L_k1_next')
    stamp(a)
    a(f'v_xor_b32 v{vTR}, 0x10000, v{vTR}'); a(f'v_xor_b32 v{vTRn}, 0x10000, v{vTRn}')
    a('s_add_u32 s6, s6, 1'); a('s_add_u32 s7, s7, 1')
    a('s_cmp_lt_u32 s6, 5'); a('s_cbranch_scc1 L_k1_tile')
    a('s_waitcnt vmcnt(0)')
    stamp_out(a)
    a.raw('L_k1_end:')
    a('s_endpgm')

def gen_k2(a):
    KF, QF, VF, S, P, O, CU, CL = 0, 36, 40, 76, 144, 180, 184, 188
    vL, vC, vG, vK, vV, vQ, vO = 192, 193, 194, 195, 196, 197, 198
    T = 200
    sWS = 8
    a.raw('k2_kernel:')
    a('s_cmp_ge_u32 s2, 512'); a('s_cbranch_scc1 L_k2_end')
    a('s_load_dwordx2 s[4:5], s[0:1], 72')
    a(f'v_and_b32 v{vL}, 63, v0'); a(f'v_lshrrev_b32 v{T}, 6, v0'); a('s_nop 0'); a(f'v_readfirstlane_b32 s3, v{T}')
    a('s_lshr_b32 s12, s2, 4')
    a('s_and_b32 s13, s2, 15'); a('s_lshl_b32 s13, s13, 2'); a('s_add_u32 s13, s13, s3'); a('s_lshl_b32 s13, s13, 5')
    a(f'v_and_b32 v{vC}, 15, v{vL}'); a(f'v_lshrrev_b32 v{vG}, 4, v{vL}')
    a('s_waitcnt lgkmcnt(0)')
    srd(a, sWS, 4, WS_SIZE)
    a('s_lshl_b32 s14, s12, 16')
    a('s_sub_u32 s15, s13, 256')
    a(f'v_lshlrev_b32 v{T}, 3, v{vG}')
    a(f'v_add_u32 v{vQ}, s13, v{vC}'); a(f'v_lshlrev_b32 v{vQ}, 5, v{vQ}'); a(f'v_add_u32 v{vQ}, v{vQ}, v{T}')
    a(f'v_add_u32 v{vK}, s13, v{vC}'); a(f'v_lshlrev_b32 v{vK}, 5, v{vK}'); a(f'v_add_u32 v{vK}, v{vK}, v{T}')
    a(f'v_lshlrev_b32 v{vV}, 12, v{vC}'); a(f'v_lshlrev_b32 v{T}, 4, v{vG}'); a(f'v_add_u32 v{vV}, v{vV}, v{T}')
    a('s_lshl_b32 s16, s13, 1'); a(f'v_add_u32 v{vV}, s16, v{vV}')
    a(f's_add_u32 s17, s14, {QB}'); a(f's_add_u32 s18, s14, {KB-8192}'); a(f's_add_u32 s19, s18, 4096'); a(f's_add_u32 s20, s18, 8192')
    a(f's_add_u32 s21, s14, {VB-512}')
    for aa in range(2):
        a(f'buffer_load_dwordx2 v[{QF+2*aa}:{QF+2*aa+1}], v{vQ}, s[{sWS}:{sWS+3}], s17 offen offset:{512*aa}')
    for t in range(18):
        sreg = [18, 19, 20][t // 8]
        a(f'buffer_load_dwordx2 v[{KF+2*t}:{KF+2*t+1}], v{vK}, s[{sWS}:{sWS+3}], s{sreg} offen offset:{512*(t%8)}')
    for p in range(9):
        a(f'buffer_load_dwordx4 v[{VF+4*p}:{VF+4*p+3}], v{vV}, s[{sWS}:{sWS+3}], s21 offen offset:{64*p}')
    a(f'v_mov_b32 v{T+1}, 0xf149f2ca'); a(f'v_lshlrev_b32 v{T}, 2, v{vG}')
    for i in range(4):
        a(f'v_add_u32 v{T+2}, {i}, v{T}')
        a(f'v_cmp_gt_u32 vcc, v{T+2}, v{vC}'); a(f'v_cndmask_b32 v{CU+i}, v{T+1}, 0, vcc'); a(f'v_cndmask_b32 v{CL+i}, 0, v{T+1}, vcc')
    a(f'v_add_u32 v{vO}, s13, v{vC}'); a(f'v_lshlrev_b32 v{vO}, 10, v{vO}'); a(f'v_lshlrev_b32 v{T}, 3, v{vG}'); a(f'v_add_u32 v{vO}, v{vO}, v{T}')
    a('s_lshl_b32 s22, s12, 5'); a(f's_add_u32 s22, s22, {OB}'); a('s_add_u32 s23, s22, 16384')
    a('s_sub_u32 s24, 256, s13'); a('s_max_i32 s24, s24, 0'); a('s_lshr_b32 s24, s24, 4')
    a(f's_mov_b32 s25, {hexf(0.25*LOG2E)}')
    a('s_cmp_lt_u32 s13, 256'); a('s_cbranch_scc1 L_k2_edge')
    def attn(edge):
        for z in range(2): a(f'v_mov_b32 v{P+z}, 0');
        for z in range(2): a(f'v_mov_b32 v{P+34+z}, 0')
        a('s_waitcnt vmcnt(9)')
        for aq in range(2):
            for tt in range(17):
                t = aq + tt
                C = f'v[{CU}:{CU+3}]' if tt == 0 else (f'v[{CL}:{CL+3}]' if tt == 16 else '0')
                a(f'v_mfma_f32_16x16x16_bf16 v[{S+4*tt}:{S+4*tt+3}], v[{KF+2*t}:{KF+2*t+1}], v[{QF+2*aq}:{QF+2*aq+1}], {C}')
            if edge:
                for tt in range(16):
                    t = aq + tt
                    a(f's_cmp_gt_u32 s24, {t}'); a('s_cselect_b32 s26, 0xf149f2ca, 0')
                    for i in range(4): a(f'v_add_f32 v{S+4*tt+i}, s26, v{S+4*tt+i}')
            m = T
            a(f'v_max3_f32 v{m}, v{S}, v{S+1}, v{S+2}')
            a(f'v_max3_f32 v{m+1}, v{S+3}, v{S+4}, v{S+5}')
            k = 6
            j = 0
            while k + 1 < 68:
                a(f'v_max3_f32 v{m+j%2}, v{m+j%2}, v{S+k}, v{S+k+1}'); k += 2; j += 1
            a(f'v_max_f32 v{m}, v{m}, v{m+1}')
            a(f'v_mov_b32 v{m+1}, v{m}'); a(f'v_permlane16_swap_b32 v{m}, v{m+1}'); a(f'v_max_f32 v{m}, v{m}, v{m+1}')
            a(f'v_mov_b32 v{m+1}, v{m}'); a(f'v_permlane32_swap_b32 v{m}, v{m+1}'); a(f'v_max_f32 v{m}, v{m}, v{m+1}')
            a(f'v_mul_f32 v{m}, s25, v{m}'); a(f'v_sub_f32 v{m}, 0, v{m}')
            for i in range(68):
                a(f'v_fma_f32 v{S+i}, v{S+i}, s25, v{m}')
            for i in range(68):
                a(f'v_exp_f32 v{S+i}, v{S+i}')
            sm = T+2
            for i in range(4): a(f'v_add_f32 v{sm+i}, v{S+i}, v{S+4+i}')
            for i in range(8, 68): a(f'v_add_f32 v{sm+i%4}, v{sm+i%4}, v{S+i}')
            for tt in range(17):
                t = aq + tt
                a(f'v_cvt_pk_bf16_f32 v{P+2*t}, v{S+4*tt}, v{S+4*tt+1}'); a(f'v_cvt_pk_bf16_f32 v{P+2*t+1}, v{S+4*tt+2}, v{S+4*tt+3}')
            a(f'v_add_f32 v{sm}, v{sm}, v{sm+1}'); a(f'v_add_f32 v{sm+2}, v{sm+2}, v{sm+3}'); a(f'v_add_f32 v{sm}, v{sm}, v{sm+2}')
            a(f'v_mov_b32 v{sm+1}, v{sm}'); a(f'v_permlane16_swap_b32 v{sm}, v{sm+1}'); a(f'v_add_f32 v{sm}, v{sm}, v{sm+1}')
            a(f'v_mov_b32 v{sm+1}, v{sm}'); a(f'v_permlane32_swap_b32 v{sm}, v{sm+1}'); a(f'v_add_f32 v{sm}, v{sm}, v{sm+1}')
            a(f'v_rcp_f32 v{sm}, v{sm}')
            if aq == 0: a('s_waitcnt vmcnt(0)')
            for p in range(9):
                C = '0' if p == 0 else f'v[{O}:{O+3}]'
                a(f'v_mfma_f32_16x16x32_bf16 v[{O}:{O+3}], v[{VF+4*p}:{VF+4*p+3}], v[{P+4*p}:{P+4*p+3}], {C}')
            for i in range(4): a(f'v_mul_f32 v{T+8+i}, v{sm}, v{O+i}')
            a(f'v_cvt_pk_bf16_f32 v{T+12}, v{T+8}, v{T+9}'); a(f'v_cvt_pk_bf16_f32 v{T+13}, v{T+10}, v{T+11}')
            a(f'buffer_store_dwordx2 v[{T+12}:{T+13}], v{vO}, s[{sWS}:{sWS+3}], s{22+aq} offen')
            if aq == 0:
                a(f'v_mov_b32 v{P}, 0'); a(f'v_mov_b32 v{P+1}, 0')
    attn(False)
    a('s_branch L_k2_end')
    label(a, 'L_k2_edge')
    attn(True)
    a.raw('L_k2_end:')
    a('s_endpgm')

def gen_k3(a):
    NB = 9; LA = 8; SLOT = 16384; NC = 36
    AS, AY, WF, XF = 0, 64, 128, 144
    vL, vN, vH, vTR, vW, vOut = 160, 161, 162, 163, 164, 165
    vXA = 166
    vXo, vXh = 168, 170
    XX = 172
    T = 184
    vXB, vTRB, vXC, vTRC = 200, 202, 204, 206
    sX, sWo, sWd, sWS, sOut = 8, 12, 16, 20, 24
    a.raw('k3_kernel:')
    a('s_cmp_ge_u32 s2, 256'); a('s_cbranch_scc1 L_k3_end')
    a('s_load_dwordx2 s[40:41], s[0:1], 0'); a('s_load_dwordx2 s[42:43], s[0:1], 16'); a('s_load_dwordx4 s[44:47], s[0:1], 48')
    a('s_load_dwordx2 s[48:49], s[0:1], 72')
    a('s_and_b32 s5, s2, 7'); a('s_lshr_b32 s4, s2, 3'); a('s_and_b32 s30, s4, 3'); a('s_lshl_b32 s30, s30, 3'); a('s_add_u32 s5, s5, s30'); a('s_lshr_b32 s4, s4, 2')
    a(f'v_and_b32 v{vL}, 63, v0'); a(f'v_lshrrev_b32 v{T}, 6, v0'); a('s_nop 0'); a(f'v_readfirstlane_b32 s3, v{T}')
    a(f'v_and_b32 v{vN}, 31, v{vL}'); a(f'v_lshrrev_b32 v{vH}, 5, v{vL}')
    a('s_waitcnt lgkmcnt(0)')
    tsn[0] = 0; stamp(a)
    srd(a, sX, 40, 2048*1024); srd(a, sWo, 42, 512*1024); srd(a, sWd, 44, 1792*1024); srd(a, sOut, 46, 2048*1024); srd(a, sWS, 48, WS_SIZE)
    a('s_lshr_b32 s6, s3, 1'); a('s_and_b32 s7, s3, 1')
    a('s_lshl_b32 s50, s5, 6')
    a('s_lshl_b32 s53, s4, 7')
    a('s_lshl_b32 s51, s3, 4'); a('s_add_u32 s51, s51, s50')
    a(f'v_lshrrev_b32 v{T}, 3, v{vL}'); a(f'v_add_u32 v{T}, s51, v{T}')
    a(f'v_and_b32 v{T+1}, 7, v{vL}'); a(f'v_lshrrev_b32 v{T+2}, 4, v{vL}')
    a('s_movk_i32 s52, 3584')
    for i in range(2):
        a(f'v_add_u32 v{T+3}, {8*i}, v{T}')
        a(f'v_add_u32 v{T+4}, {4*i}, v{T+2}'); a(f'v_xor_b32 v{T+4}, v{T+1}, v{T+4}'); a(f'v_lshlrev_b32 v{T+4}, 4, v{T+4}')
        a(f'v_lshlrev_b32 v{vXo+i}, 10, v{T+3}'); a(f'v_add_u32 v{vXo+i}, v{vXo+i}, v{T+4}')
        a(f'v_mul_lo_u32 v{vXh+i}, v{T+3}, s52'); a(f'v_add_u32 v{vXh+i}, v{vXh+i}, v{T+4}')
    a(f'v_lshrrev_b32 v{T}, 2, v{vL}'); a('s_lshl_b32 s54, s3, 4'); a(f'v_add_u32 v{T}, s54, v{T}'); a(f'v_lshlrev_b32 v{vW}, 10, v{T}')
    a(f'v_and_b32 v{T+1}, 3, v{vL}'); a(f'v_lshlrev_b32 v{T+1}, 4, v{T+1}'); a(f'v_add_u32 v{vW}, v{vW}, v{T+1}'); a(f'v_add_u32 v{vW}, s53, v{vW}')
    a(f'v_lshlrev_b32 v{T}, 7, v{vN}')
    a(f'v_lshrrev_b32 v{T+1}, 1, v{vN}'); a(f'v_and_b32 v{T+1}, 7, v{T+1}'); a(f'v_lshlrev_b32 v{T+2}, 2, v{vH}')
    a(f'v_add_u32 v{T+3}, s3, v{T+2}'); a(f'v_xor_b32 v{T+3}, v{T+3}, v{T+1}'); a(f'v_lshlrev_b32 v{T+3}, 4, v{T+3}')
    a(f'v_add_u32 v{vXA}, v{T}, v{T+3}'); a(f'v_add_u32 v{vXA+1}, 4096, v{vXA}')
    a(f'v_lshrrev_b32 v{T+2}, 2, v{vL}'); a(f'v_and_b32 v{T+2}, 3, v{T+2}')
    a(f'v_lshlrev_b32 v{T+3}, 5, v{vH}'); a(f'v_add_u32 v{T+2}, v{T+2}, v{T+3}'); a(f'v_lshlrev_b32 v{T+2}, 6, v{T+2}')
    a(f'v_lshrrev_b32 v{T+3}, 4, v{vL}'); a(f'v_and_b32 v{T+3}, 1, v{T+3}'); a(f'v_lshlrev_b32 v{T+3}, 5, v{T+3}')
    a(f'v_and_b32 v{T+4}, 3, v{vL}'); a(f'v_lshlrev_b32 v{T+4}, 3, v{T+4}')
    a(f'v_add_u32 v{vTR}, v{T+2}, v{T+3}'); a(f'v_add_u32 v{vTR}, v{vTR}, v{T+4}')
    a('s_lshl_b32 s54, s3, 9'); a('s_add_u32 s54, s54, 8192'); a(f'v_add_u32 v{vTR}, s54, v{vTR}')
    a('s_lshl_b32 s54, s6, 5'); a('s_add_u32 s54, s54, s50'); a(f'v_add_u32 v{T}, s54, v{vN}')
    a('s_lshl_b32 s54, s7, 6'); a('s_add_u32 s54, s54, s53')
    a(f'v_lshlrev_b32 v{vOut}, 10, v{T}'); a(f'v_add_u32 v{vOut}, s54, v{vOut}')
    a(f'v_lshlrev_b32 v{T+1}, 3, v{vH}'); a(f'v_add_u32 v{T+5}, v{vOut}, v{T+1}')
    for q in range(4):
        a(f'buffer_load_dwordx2 v[{XX+2*q}:{XX+2*q+1}], v{T+5}, s[{sX}:{sX+3}], 0 offen offset:{16*q}')
    a(f'v_lshlrev_b32 v{T+1}, 4, v{vH}'); a(f'v_add_u32 v{vOut}, v{vOut}, v{T+1}')
    a('s_lshl_b32 s56, s3, 11')
    a('s_lshl_b32 s59, s3, 10')
    for i in range(128):
        a(f'v_mov_b32 v{AS+i}, 0')
    def issue_dyn(vx, sr):
        for i in range(2):
            a(f's_add_u32 s55, s56, s63'); a(f's_add_u32 s55, s55, {i*1024}'); a('s_mov_b32 m0, s55')
            if 'noX' not in EXP: a(f'buffer_load_dwordx4 v{vx+i}, s[{sWS}:{sWS+3}], s58 offen lds')
        for hf in range(2):
            a(f's_add_u32 s55, s59, s63'); a(f's_add_u32 s55, s55, {8192+hf*4096}'); a('s_mov_b32 m0, s55')
            if hf == 1: a('s_add_u32 s66, s57, 64')
            if 'noW' not in EXP: a(f'buffer_load_dwordx4 v{vW}, s[{sr}:{sr+3}], {"s57" if hf == 0 else "s66"} offen lds')
        a('s_add_u32 s58, s58, 128'); a('s_add_u32 s57, s57, 65536')
        a(f's_add_u32 s63, s63, {SLOT}'); a(f's_cmp_eq_u32 s63, {NB*SLOT}'); a('s_cselect_b32 s63, 0, s63')
    def reads_dyn(fb, nxt):
        xa, tr = (vXC, vTRC) if nxt else (vXB, vTRB)
        for m in range(2):
            a(f'ds_read_b128 v[{XF+fb*8+4*m}:{XF+fb*8+4*m+3}], v{xa+m}')
        for c in range(2):
            for sec in range(2):
                d = WF + fb*8 + c*4 + sec*2
                a(f'ds_read_b64_tr_b16 v[{d}:{d+1}], v{tr} offset:{c*4096+sec*256}')
    def set_addrs():
        a(f's_add_u32 s65, s64, {SLOT}'); a(f's_cmp_eq_u32 s65, {NB*SLOT}'); a('s_cselect_b32 s65, 0, s65')
        for m in range(2):
            a(f'v_add_u32 v{vXB+m}, s64, v{vXA+m}'); a(f'v_add_u32 v{vXC+m}, s65, v{vXA+m}')
        a(f'v_add_u32 v{vTRB}, s64, v{vTR}'); a(f'v_add_u32 v{vTRC}, s65, v{vTR}')
    def mf(acc, fb):
        for m in range(2):
            for c in range(2):
                d = acc + (2*m+c)*16
                a(f'v_mfma_f32_32x32x16_bf16 v[{d}:{d+15}], v[{WF+fb*8+c*4}:{WF+fb*8+c*4+3}], v[{XF+fb*8+4*m}:{XF+fb*8+4*m+3}], v[{d}:{d+15}]')
    def body(acc, lbl, vx, sr):
        label(a, lbl)
        for half in range(2):
            a(f's_waitcnt vmcnt({4*(LA-2)})'); a('s_barrier')
            issue_dyn(vx, sr)
            reads_dyn((half+1) % 2, True)
            a('s_waitcnt lgkmcnt(6)')
            mf(acc, half)
            a('s_mov_b32 s64, s65'); set_addrs()
        a('s_sub_u32 s67, s67, 1'); a('s_cmp_lg_u32 s67, 0'); a(f's_cbranch_scc1 {lbl}')
    a('s_mov_b32 s63, 0'); a('s_mov_b32 s64, 0'); a(f's_mov_b32 s58, {OB}'); a('s_mov_b32 s57, 0')
    for c in range(LA): issue_dyn(vXo, sWo)
    a(f's_mov_b32 s58, {HB}'); a('s_mov_b32 s57, 0')
    set_addrs()
    a(f's_waitcnt vmcnt({4*(LA-1)})'); a('s_barrier')
    reads_dyn(0, False)
    stamp(a)
    a('s_mov_b32 s67, 4'); body(AS, 'L_k3_p1', vXh, sWd)
    stamp(a)
    a('s_mov_b32 s67, 14'); body(AY, 'L_k3_p2', vXh, sWd)
    stamp(a)
    a('s_waitcnt vmcnt(0) lgkmcnt(0)'); a('s_barrier')
    a(f'v_lshlrev_b32 v{T}, 4, v{vL}'); a('s_lshl_b32 s54, s3, 15'); a(f'v_add_u32 v{T+1}, s54, v{T}')
    for r in range(32):
        a(f'ds_write_b128 v{T+1}, v[{4*r}:{4*r+3}] offset:{r*1024}')
    a('s_waitcnt lgkmcnt(0)'); a('s_barrier')
    a('s_lshl_b32 s54, s3, 12'); a(f'v_add_u32 v{T+1}, s54, v{T}'); a(f'v_add_u32 v{T+2}, 0x10000, v{T+1}')
    for acc, base in ((0, 0), (16, 16384)):
        for src in range(4):
            for q in range(4):
                d = 32 + src*16 + q*4
                off = src*32768+base+q*1024
                a(f'ds_read_b128 v[{d}:{d+3}], v{T+1+off//65536} offset:{off%65536}')
        a('s_waitcnt lgkmcnt(0)')
        for i in range(16):
            a(f'v_add_f32 v{32+i}, v{32+i}, v{48+i}'); a(f'v_add_f32 v{64+i}, v{64+i}, v{80+i}'); a(f'v_add_f32 v{acc+i}, v{32+i}, v{64+i}')
    AS, AY = 0, 16
    a(f's_mov_b32 s60, {hexf(-LOG2E)}')
    for i in range(16):
        y, s_ = AY+i, AS+i
        t = T+8+(i%4)*2
        a(f'v_mul_f32 v{t}, s60, v{y}'); a(f'v_exp_f32 v{t}, v{t}'); a(f'v_add_f32 v{t}, 1.0, v{t}'); a(f'v_rcp_f32 v{t}, v{t}')
        a(f'v_mul_f32 v{t}, v{t}, v{y}'); a(f'v_mul_f32 v{s_}, v{s_}, v{t}')
    for q in range(4):
        for hh in range(2):
            t = T+16+hh
            e = 2*hh
            a(f'v_lshlrev_b32 v{t}, 16, v{XX+2*q+hh}'); a(f'v_add_f32 v{AS+4*q+e}, v{AS+4*q+e}, v{t}')
            a(f'v_and_b32 v{t}, 0xffff0000, v{XX+2*q+hh}'); a(f'v_add_f32 v{AS+4*q+e+1}, v{AS+4*q+e+1}, v{t}')
    for q in range(4):
        a(f'v_cvt_pk_bf16_f32 v{T+2*q}, v{AS+4*q}, v{AS+4*q+1}'); a(f'v_cvt_pk_bf16_f32 v{T+2*q+1}, v{AS+4*q+2}, v{AS+4*q+3}')
    a(f'v_permlane32_swap_b32 v{T}, v{T+2}'); a(f'v_permlane32_swap_b32 v{T+1}, v{T+3}')
    a(f'v_permlane32_swap_b32 v{T+4}, v{T+6}'); a(f'v_permlane32_swap_b32 v{T+5}, v{T+7}')
    a(f'buffer_store_dwordx4 v[{T}:{T+3}], v{vOut}, s[{sOut}:{sOut+3}], 0 offen')
    a(f'buffer_store_dwordx4 v[{T+4}:{T+7}], v{vOut}, s[{sOut}:{sOut+3}], 0 offen offset:32')
    a('s_waitcnt vmcnt(0)'); stamp(a); stamp_out(a)
    a.raw('L_k3_end:')
    a('s_endpgm')

def kd(name, vg):
    return f'''.amdhsa_kernel {name}
  .amdhsa_next_free_vgpr {vg}
  .amdhsa_next_free_sgpr 102
  .amdhsa_accum_offset {vg}
  .amdhsa_group_segment_fixed_size 0
  .amdhsa_kernarg_size 80
  .amdhsa_user_sgpr_count 2
  .amdhsa_user_sgpr_kernarg_segment_ptr 1
  .amdhsa_system_sgpr_workgroup_id_x 1
.end_amdhsa_kernel
'''
def main():
    hdr = open('recurrent_scan__sliding_block__glu_gated_geglu__prompt.s.ref').read().split('; @launch')[0]
    out = hdr
    out += '; @launch kernel=k1_kernel grid=(256,1,1) block=(256,1,1) lds=131072\n'
    out += '; @launch kernel=k2_kernel grid=(512,1,1) block=(256,1,1) lds=0\n'
    out += '; @launch kernel=k3_kernel grid=(256,1,1) block=(256,1,1) lds=147456\n'
    out += '.amdgcn_target "amdgcn-amd-amdhsa--gfx950"\n.text\n'
    for name, g in (('k1_kernel', gen_k1), ('k2_kernel', gen_k2), ('k3_kernel', gen_k3)):
        a = Asm()
        out += f'.globl {name}\n.p2align 8\n.type {name},@function\n'
        g(a); out += a.text()
    out += '.section .rodata,"a"\n.p2align 6\n'
    out += kd('k1_kernel', 256) + '.p2align 6\n' + kd('k2_kernel', 256) + '.p2align 6\n' + kd('k3_kernel', 216)
    open('recurrent_scan__sliding_block__glu_gated_geglu__prompt.s', 'w').write(out)
main()
```
